```python
import torch

def _softmax(x, axis=-1):
    return torch.softmax(x, dim=axis)
def _gelu(x):
    return torch.nn.functional.gelu(x, approximate="tanh")
def _silu(x):
    return torch.nn.functional.silu(x)
def _sigmoid(x):
    return torch.sigmoid(x)
def _layernorm(x, axis=-1, eps=1e-5):
    m = x.mean(dim=axis, keepdim=True)
    v = x.var(dim=axis, keepdim=True, unbiased=False)
    return (x - m) / torch.sqrt(v + eps)
def _scatter_add(tgt, idx, src, axis=0):
    return tgt.clone().index_add_(axis, idx, src)
def _segment_sum(src, seg, n):
    out = torch.zeros((n,) + src.shape[1:], dtype=src.dtype)
    return out.index_add_(0, seg, src)
def _pad(x, pw):
    flat = tuple(v for pair in reversed(pw) for v in pair)
    return torch.nn.functional.pad(x, flat)

kernel_name = 'concat_heads__softmax_full_mha__linear_kernel_hedgehog__prompt'

def setup_inputs():

    _w = (lambda a: (lambda t: t.to(torch.bfloat16) if t.is_floating_point() else t)(torch.as_tensor(a)))
    def _A_setup():
        B, S, D = 1, 2048, 640
        return {
            "x": _w((lambda *s: torch.randn(*s, dtype=torch.bfloat16) * 0.2)(B, S, D)),
            "wqkv": _w((lambda *s: torch.randn(*s, dtype=torch.bfloat16) * 0.2)(D, 3 * D)),
            "wo": _w((lambda *s: torch.randn(*s, dtype=torch.bfloat16) * 0.05)(D, D)),
        }
    _A_in = _A_setup()

    def _B_setup():
        B, S, D, H = 1, 2048, 640, 32
        Dh = D // H
        return {
            "x": _w((lambda *s: torch.randn(*s, dtype=torch.bfloat16) * 0.4)(B, S, D)),
            "wqkv": _w((lambda *s: torch.randn(*s, dtype=torch.bfloat16) * 0.4)(D, 3 * D)),
            "w_phi": _w((lambda *s: torch.randn(*s, dtype=torch.bfloat16) * 0.4)(H, Dh, Dh) * (Dh ** -0.5)),
            "wo": _w((lambda *s: torch.randn(*s, dtype=torch.bfloat16) * 0.05)(D, D)),
        }
    _B_in = _B_setup()

    return {
        "A_x": _A_in["x"],
        "A_wqkv": _A_in["wqkv"],
        "A_wo": _A_in["wo"],
        "B_x": _B_in["x"],
        "B_wqkv": _B_in["wqkv"],
        "B_w_phi": _B_in["w_phi"],
        "B_wo": _B_in["wo"],
    }

def reference(A_x, A_wqkv, A_wo, B_x, B_wqkv, B_w_phi, B_wo):
    def _A_ref(x, wqkv, wo):
        B, S, D = x.shape
        H = 32; Dh = D // H
        qkv = (lambda x, *d: x.permute(*d))((x @ wqkv).reshape(B, S, 3, H, Dh), 2, 0, 3, 1, 4)
        q, k, v = qkv[0], qkv[1], qkv[2]
        scale = Dh ** -0.5
        scores = torch.einsum("bhqd,bhkd->bhqk", q, k) * scale
        p = _softmax(scores, axis=-1)
        o = torch.einsum("bhqk,bhkd->bhqd", p, v)
        return (lambda x, *d: x.permute(*d))(o, 0, 2, 1, 3).reshape(B, S, D) @ wo

    def _B_ref(x, wqkv, w_phi, wo):
        B, S, D = x.shape
        H = 32; Dh = D // H
        qkv = (lambda x, *d: x.permute(*d))((x @ wqkv).reshape(B, S, 3, H, Dh), 2, 0, 3, 1, 4)
        q, k, v = qkv[0], qkv[1], qkv[2]
        pq = torch.einsum("bhsd,hdf->bhsf", q, w_phi)
        pk = torch.einsum("bhsd,hdf->bhsf", k, w_phi)
        phi_q = torch.concatenate([_softmax(pq, axis=-1), _softmax(-pq, axis=-1)], axis=-1)
        phi_k = torch.concatenate([_softmax(pk, axis=-1), _softmax(-pk, axis=-1)], axis=-1)
        kv = torch.einsum("bhsf,bhsd->bhfd", phi_k, v)
        z  = torch.einsum("bhsf->bhf", phi_k)
        num = torch.einsum("bhqf,bhfd->bhqd", phi_q, kv)
        den = torch.einsum("bhqf,bhf->bhq", phi_q, z)[..., None] + 1e-6
        o = num / den
        return (lambda x, *d: x.permute(*d))(o, 0, 2, 1, 3).reshape(B, S, D) @ wo

    a = _A_ref(A_x, A_wqkv, A_wo)
    b = _B_ref(B_x, B_wqkv, B_w_phi, B_wo)
    return torch.concatenate([a, b], axis=-1)
```

```python
class Asm:
    def __init__(self):
        self.lines = []
    def __call__(self, s=""):
        for l in s.split("\n"):
            self.lines.append(l)
    def op(self, s):
        self.lines.append("  " + s)
    def label(self, name):
        self.lines.append(name + ":")
    def text(self):
        return "\n".join(self.lines) + "\n"

def vr(a, n=1):
    return f"v{a}" if n == 1 else f"v[{a}:{a+n-1}]"
def ar(a, n=1):
    return f"a{a}" if n == 1 else f"a[{a}:{a+n-1}]"
def sr(a, n=1):
    return f"s{a}" if n == 1 else f"s[{a}:{a+n-1}]"

class LgkmTracker:
    def __init__(self, asm):
        self.asm = asm
        self.issued = 0
        self.done = 0
    def issue(self):
        self.issued += 1
        return self.issued
    def need(self, opid):
        if opid <= self.done: return
        n = self.issued - opid
        assert n <= 15, n
        self.asm.op(f"s_waitcnt lgkmcnt({n})")
        self.done = opid

import re
_SCC_W = re.compile(r"^s_(add|addc|sub|subb|and|or|xor|andn2|orn2|nand|nor|xnor|not|lshl|lshr|ashr|bfe|min|max|cmp|cmpk|addk|abs|bitcmp|wqm|quadmask|bcnt|lshl[1-4]_add|mul_hi_xx)")
def verify_scc(text):
    last = None
    bad = []
    for n, l in enumerate(text.split("\n")):
        t = l.strip()
        if not t or t.startswith(";") or t.startswith("."): continue
        if t.endswith(":"):
            continue
        op = t.split()[0]
        if op.startswith("s_cselect") or op.startswith("s_cbranch_scc"):
            if last is None or not last.startswith("s_cmp"):
                bad.append((n + 1, t, last))
        if _SCC_W.match(op): last = op
    return bad
```

```python
from asmlib import *

class AttnRegs:
    def __init__(self, base=0):
        b = base
        self.S = [b, b+16, b+32, b+48]; b += 64
        self.O = [b, b+16]; b += 32
        self.Qm = [b, b+4]; b += 8
        self.Qlo = [b, b+2]; b += 4
        self.Qhi = [b, b+2]; b += 4
        self.Km = [b, b+4]; b += 8
        self.V0 = [b, b+4]; b += 8
        self.V1 = [b, b+4]; b += 8
        self.Kt = [b, b+2]; b += 4
        self.idx = b; b += 1
        self.aKm = b; b += 1
        self.aKt = b; b += 1
        self.aV = b; b += 1
        self.end = b

def qk_main(a, R, n, tile, c="0"):
    a.op(f"v_mfma_f32_32x32x16_bf16 {vr(R.S[n%4],16)}, {vr(R.Km[tile%2],4)}, {vr(R.Qm[n%2],4)}, {c}")
def qk_tail(a, R, n, tile):
    kt = R.Kt[(tile // 2) % 2]
    q = (R.Qhi if (tile & 1) else R.Qlo)[n%2]
    a.op(f"v_mfma_f32_32x32x8bf16_1k {vr(R.S[n%4],16)}, {vr(kt,2)}, {vr(q,2)}, {vr(R.S[n%4],16)}")
def pv(a, R, n, s):
    tile = n >> 1
    v = (R.V1 if s else R.V0)[tile % 2]
    a.op(f"v_smfmac_f32_32x32x32_bf16 {vr(R.O[n%2],16)}, {vr(v,4)}, {vr(R.S[n%4]+8*s,8)}, {vr(R.idx)}")
def exps(a, R, n, lo, hi):
    for i in range(lo, hi):
        a.op(f"v_exp_f32 {vr(R.S[n%4]+i)}, {vr(R.S[n%4]+i)}")
def rd_km(a, R, tk, t0):
    a.op(f"ds_read_b128 {vr(R.Km[tk%2],4)}, {vr(R.aKm)} offset:{(tk-t0)*512}")
def rd_kt(a, R, pr, t0):
    a.op(f"ds_read_b64 {vr(R.Kt[pr%2],2)}, {vr(R.aKt)} offset:{(pr-t0//2)*512}")
def rd_v(a, R, tv, s, t0):
    a.op(f"ds_read_b128 {vr((R.V1 if s else R.V0)[tv%2],4)}, {vr(R.aV)} offset:{(tv-t0)*1280 + s*640}")

def slots(a, R, lg, ids, n0, n1, opts, hooks={}):
    sx = opts.get('sexec', 40)
    t0 = opts['t0']
    for n in range(n0, n1):
        t = n >> 1
        if (n - n0) in hooks: hooks[n - n0]()
        if n % 2 == 1:
            tk = (n + 3) // 2
            rd_km(a, R, tk, t0); ids[('Km', tk)] = lg.issue()
        if n % 4 == 1:
            pr = n // 4 + 1
            rd_kt(a, R, pr, t0); ids[('Kt', pr)] = lg.issue()
        tn = (n + 1) >> 1
        lg.need(ids[('Km', tn)])
        qk_main(a, R, n + 1, tn)
        exps(a, R, n, 0, 4)
        lg.need(ids[('Kt', tn // 2)])
        qk_tail(a, R, n + 1, tn)
        exps(a, R, n, 4, 8)
        lg.need(ids[('V1', (n - 1) >> 1)])
        pv(a, R, n - 1, 1)
        if n % 2 == 0:
            tv = t + 1
            if opts.get('vexec', True): a.op(f"s_mov_b64 exec, s[{sx}:{sx+1}]")
            rd_v(a, R, tv, 0, t0); ids[('V0', tv)] = lg.issue()
            rd_v(a, R, tv, 1, t0); ids[('V1', tv)] = lg.issue()
            if opts.get('vexec', True): a.op(f"s_mov_b64 exec, -1")
        exps(a, R, n, 8, 12)
        lg.need(ids[('V0', t)])
        pv(a, R, n, 0)
        exps(a, R, n, 12, 16)

def loop_body(a, R, opts, nslots=16, hooks={}):
    dummy = Asm()
    lg = LgkmTracker(dummy)
    ids = {}
    nt = nslots // 2
    for key in [('Km', -nt), ('Km', -nt+1), ('Kt', -nt//2), ('V0', -nt), ('V1', -nt), ('V1', -nt-1)]:
        ids[key] = 0
    o = dict(opts); o['t0'] = -nt
    slots(dummy, R, lg, ids, -nslots, 0, o)
    lg.asm = a
    o['t0'] = 0
    slots(a, R, lg, ids, 0, nslots, o, hooks)
```

```python
import sys, importlib
sys.path.insert(0, "gen")
from common import *
HEADER = """; Kernarg layout: A_x@0 A_wqkv@8 A_wo@16 B_x@24 B_wqkv@32 B_w_phi@40 B_wo@48 d_out@56 d_debug@64 d_ws@72
"""
import hazard
def build(kernels, verbose=False):
    a = Asm()
    a(HEADER.rstrip())
    for name, gen, grid, block, lds in kernels:
        a(f"; @launch kernel={name} grid=({grid},1,1) block=({block},1,1) lds={lds}")
    a('.amdgcn_target "amdgcn-amd-amdhsa--gfx950"')
    a(".text")
    descs = []
    seen = set()
    for name, gen, grid, block, lds in kernels:
        if name in seen: continue
        seen.add(name)
        nv = gen(a, name)
        descs.append(kernel_desc(name, nv))
    a('.section .rodata,"a"')
    for d in descs: a(d.rstrip())
    txt = hazard.fix(a.text(), verbose=verbose)
    bad = verify_scc(txt)
    assert not bad, bad
    return txt
```

```python
from asmlib import *
BR_STRIDE = 0x800000
WS_Q = 0x000000
WS_KV = 0x280000
QB = 81920
KVB = 163840
OFF_T = 65536
OFF_V = 81920
WS_OI = 0x1000000
OI_STRIDE = 0x280000
WS_KVP = 0x1600000
WS_SIZE = 0x10000000

KARG = dict(A_x=0, A_wqkv=8, A_wo=16, B_x=24, B_wqkv=32, B_wphi=40, B_wo=48, out=56, dbg=64, ws=72)

def srd(a, s, base, nbytes):
    a.op(f"s_mov_b32 s{s}, s{base}")
    a.op(f"s_mov_b32 s{s+1}, s{base+1}")
    a.op(f"s_mov_b32 s{s+2}, {nbytes:#x}")
    a.op(f"s_mov_b32 s{s+3}, 0x00020000")

def kernel_header(a, name):
    a(f".globl {name}")
    a(".p2align 8")
    a(f".type {name},@function")
    a(f"{name}:")

def kernel_desc(name, nvgpr, nsgpr=102, accum=None):
    accum = accum if accum is not None else ((nvgpr + 3)//4)*4
    return f""".p2align 6
.amdhsa_kernel {name}
  .amdhsa_next_free_vgpr {nvgpr}
  .amdhsa_next_free_sgpr {nsgpr}
  .amdhsa_accum_offset {accum}
  .amdhsa_group_segment_fixed_size 0
  .amdhsa_kernarg_size 80
  .amdhsa_user_sgpr_count 2
  .amdhsa_user_sgpr_kernarg_segment_ptr 1
  .amdhsa_system_sgpr_workgroup_id_x 1
  .amdhsa_float_denorm_mode_32 3
  .amdhsa_float_denorm_mode_16_64 3
.end_amdhsa_kernel
"""

class RegAlloc:
    def __init__(self, start=0):
        self.n = start
    def get(self, cnt=1, align=1):
        self.n = (self.n + align - 1)//align*align
        r = self.n
        self.n += cnt
        return r

WS_STAMP = 0x8000000
class Stamps:
    def __init__(self, a, enabled, base=64, slot=0):
        self.a = a; self.on = enabled; self.base = base; self.n = 0; self.slot = slot
    def stamp(self):
        if not self.on: return
        assert self.n < 8
        self.a.op(f"s_memtime s[{self.base+2*self.n}:{self.base+2*self.n+1}]")
        self.n += 1
    def real(self):
        if not self.on: return
        self.a.op(f"s_memrealtime s[{self.base+2*self.n}:{self.base+2*self.n+1}]")
        self.n += 1
    def dump(self, srd_ws, swave, vtmp, nwaves_log2=4):
        if not self.on: return
        a = self.a
        a.op("s_waitcnt lgkmcnt(0)")
        a.op(f"s_lshl_b32 s{self.base+30}, s2, {nwaves_log2}")
        a.op(f"s_add_u32 s{self.base+30}, s{self.base+30}, s{swave}")
        a.op(f"s_lshl_b32 s{self.base+30}, s{self.base+30}, 5")
        a.op(f"s_add_u32 s{self.base+30}, s{self.base+30}, {WS_STAMP + self.slot*0x40000}")
        a.op(f"v_mov_b32 v{vtmp}, 0")
        for i in range(self.n):
            a.op(f"v_mov_b32 v{vtmp+1}, s{self.base+2*i}")
            a.op(f"buffer_store_dword v{vtmp+1}, v{vtmp}, s[{srd_ws}:{srd_ws+3}], s{self.base+30} offen offset:{4*i}")
```

```python
import re, sys
TRANS = ("v_exp_", "v_log_", "v_rcp_", "v_rsq_", "v_sqrt_", "v_sin_", "v_cos_")
def regs(tok):
    tok = tok.strip()
    m = re.fullmatch(r"-?\|?([vsa])(\d+)\|?", tok)
    if m: return {(m.group(1), int(m.group(2)))}
    m = re.fullmatch(r"-?([vsa])\[(\d+):(\d+)\]", tok)
    if m: return {(m.group(1), i) for i in range(int(m.group(2)), int(m.group(3)) + 1)}
    if tok == "vcc": return {("s", "vcc")}
    if tok == "exec": return {("s", "exec")}
    if tok == "m0": return {("s", "m0")}
    return set()
def mfma_passes(op):
    if "32x32x4" in op and ("2b" in op or "bf16_1k" in op or "bf161k" in op.replace("_","")): return 16
    if "32x32" in op: return 8
    if "16x16" in op: return 4
    return 8
class I:
    def __init__(self, line, n):
        self.n = n; self.txt = line
        parts = line.split(None, 1)
        self.op = parts[0]
        ops = [p.strip() for p in parts[1].split(",")] if len(parts) > 1 else []
        if ops:
            ops[-1] = ops[-1].split()[0] if ops[-1].split() else ops[-1]
        self.ops = ops
        op = self.op
        self.valu = op.startswith("v_") and not op.startswith("v_mfma") and not op.startswith("v_smfmac")
        self.mfma = op.startswith("v_mfma") or op.startswith("v_smfmac")
        self.trans = op.startswith(TRANS)
        self.vmem = op.startswith("buffer_") or op.startswith("global_")
        self.ds = op.startswith("ds_")
        self.salu = op.startswith("s_")
        self.states = 1
        if op == "s_nop": self.states = int(ops[0], 0) + 1
        w = set(); r = set()
        R = [regs(o) for o in ops]
        if self.mfma:
            w = R[0]; self.A = R[1]; self.B = R[2]
            if op.startswith("v_smfmac"): self.C = R[0]; r = R[0] | R[1] | R[2] | R[3]; self.idx = R[3]
            else: self.C = R[3]; r = R[1] | R[2] | R[3]
        elif self.valu:
            if op.startswith("v_cmp"):
                w = R[0]; r = set().union(*R[1:])
            elif op.startswith("v_readfirstlane") or op.startswith("v_readlane"):
                w = R[0]; r = set().union(*R[1:])
            elif op.startswith("v_swap") or op.startswith("v_permlane"):
                w = R[0] | R[1]; r = R[0] | R[1]
            elif op.startswith(("v_add_co", "v_sub_co", "v_addc_co", "v_subb_co")):
                w = R[0] | R[1]; r = set().union(*R[2:])
            else:
                w = R[0]; r = set().union(*R[1:]) if len(R) > 1 else set()
                if op.startswith(("v_fmac", "v_pk_fmac", "v_mac")): r |= R[0]
                if op.startswith("v_cndmask") and len(ops) == 3: r |= {("s", "vcc")}
                if op.endswith("_d16_hi") or "d16" in op: r |= R[0]
        elif self.ds:
            if op.startswith("ds_read") or op.startswith("ds_bpermute") or op.startswith("ds_swizzle"):
                w = R[0]; r = set().union(*R[1:]) if len(R) > 1 else set()
            else: r = set().union(*R)
        elif self.vmem:
            lds = " lds" in line
            if "load" in op and not lds:
                w = R[0]; r = set().union(*R[1:])
            elif "atomic" in op:
                r = set().union(*R)
                if "sc0" in line: w = R[0]
            else: r = set().union(*R)
            self.lds_dma = lds
            if lds: r |= {("s", "m0")}
            self.wide_store = ("store_dwordx4" in op or "store_dwordx3" in op)
            self.data = R[0] if "store" in op else set()
        elif self.salu:
            if op.startswith(("s_cmp", "s_cbranch", "s_branch", "s_waitcnt", "s_barrier", "s_nop", "s_endpgm", "s_setprio", "s_sleep")): r = set().union(*R) if R else set()
            else:
                w = R[0] if R else set(); r = set().union(*R[1:]) if len(R) > 1 else set()
        self.w = w; self.r = r
def isv(x): return x[0] in ("v", "a")
def check(text, window=24):
    lines = []
    labels = {}
    for n, l in enumerate(text.split("\n")):
        t = l.split(";")[0].strip()
        if not t or t.startswith("."): continue
        if t.endswith(":"):
            labels[t[:-1]] = len(lines); continue
        lines.append(I(t, n + 1))
    problems = []
    def pair(p, c, dist):
        need = 0; why = ""
        def upd(n, s):
            nonlocal need, why
            if n > need: need, why = n, s
        pv = {x for x in p.w if isv(x)}; ps = {x for x in p.w if x[0] == "s"}
        if p.valu:
            if ps & c.r and (c.valu or c.mfma): upd(2, "VALU sgpr write -> VALU read")
            if ps & c.r and c.vmem: upd(5, "VALU sgpr write -> VMEM read")
            if ps & c.r and c.op.startswith(("v_readlane", "v_writelane")): upd(4, "VALU sgpr -> lane select")
            if pv & c.r and c.op.startswith(("v_readfirstlane", "v_readlane")): upd(1, "VALU vgpr -> readlane")
            if pv & c.r and c.op.startswith("v_permlane"): upd(2, "VALU vgpr -> permlane")
            if pv & c.r and c.mfma: upd(2, "VALU vgpr -> MFMA read")
            if p.trans and pv & c.r and c.valu and not c.trans: upd(1, "trans -> VALU")
            if pv & c.r and "dpp" in c.txt: upd(2, "VALU -> DPP")
        if p.mfma:
            ps_ = mfma_passes(p.op)
            tab = {4: 8, 8: 12, 16: 20}[ps_]
            if c.mfma:
                if pv & (c.A | c.B | getattr(c, "idx", set())): upd(tab, "MFMA D -> MFMA A/B")
                if pv & c.C:
                    if c.C == pv and mfma_passes(c.op) == ps_: pass
                    else: upd({4: 6, 8: 10, 16: 18}[ps_], "MFMA D -> MFMA C partial/overlap")
            else:
                if pv & (c.r | c.w) and (c.valu or c.vmem or c.ds): upd(tab, "MFMA D -> VALU/MEM access")
            if (c.valu) and (p.C & c.w) and not (p.C == pv): upd({4: 3, 8: 7, 16: 15}[ps_], "MFMA SrcC WAR")
        if p.salu and ("s", "m0") in p.w and c.vmem and getattr(c, "lds_dma", False): upd(1, "M0 -> LDS DMA")
        if p.vmem and getattr(p, "wide_store", False) and (p.data & c.w) and (c.valu): upd(2, "wide store data WAR (VALU)")
        if p.vmem and getattr(p, "wide_store", False) and (p.data & c.w) and not c.valu: upd(1, "wide store data WAR")
        if need > dist:
            problems.append((c.n, need - dist, f"line {c.n}: '{c.txt}' needs {need} states after line {p.n} '{p.txt}' (has {dist}): {why}"))
    N = len(lines)
    def scan_from(i, seq):
        dist = 0
        for j in seq:
            c = lines[j]
            pair(lines[i], c, dist)
            dist += c.states
            if dist >= window: break
    for i, p in enumerate(lines):
        if not (p.valu or p.mfma or p.salu or p.vmem): continue
        stack = [(i + 1, 0)]
        seen = set()
        while stack:
            j, dist = stack.pop()
            while j < N and dist < window:
                if (j, dist) in seen: break
                seen.add((j, dist))
                c = lines[j]
                pair(p, c, dist)
                dist += c.states
                if c.op == "s_endpgm": break
                if c.op == "s_branch":
                    j = labels[c.ops[0]]; continue
                if c.op.startswith("s_cbranch"):
                    stack.append((labels[c.ops[0]], dist))
                j += 1
    return sorted(set(problems))
def fix(text, verbose=False):
    for it in range(50):
        pr = check(text)
        if not pr: return text
        need = {}
        for n, d, msg in pr:
            need[n] = max(need.get(n, 0), d)
            if verbose: print("fix:", msg)
        lines = text.split("\n")
        for n in sorted(need, reverse=True):
            lines.insert(n - 1, f"  s_nop {need[n]-1}")
        text = "\n".join(lines)
    raise RuntimeError("hazard fix did not converge")
if __name__ == "__main__":
    pr = check(open(sys.argv[1]).read())
    for p in pr: print(p[2])
    print(len(pr), "problems")
```

```python
from common import *
from sched import *
QSCALE = 20**-0.5 * 1.4426950408889634
import struct
def f32hex(x): return "0x%08x" % struct.unpack("<I", struct.pack("<f", x))[0]

XSLOT = 16384
WG_STRIDE = 1088
WSLOT = 32*WG_STRIDE
LDS_X = 0
LDS_W = 3*XSLOT
K1_LDS = 3*XSLOT + 3*WSLOT
NST = 10

def gen_k1(a, name="k1_kernel", stamps=False, opts={}):
    kernel_header(a, name)
    st_ = Stamps(a, stamps)
    st_.stamp()
    ra = RegAlloc(0)
    vtid = ra.get(1); vl = ra.get(1)
    t0 = ra.get(1); t1 = ra.get(1); t2 = ra.get(1); t3 = ra.get(1); t4 = ra.get(1); t5 = ra.get(1)
    vxd = ra.get(4)
    vwd = ra.get(4)
    aX = [[ra.get(1), ra.get(1)], [ra.get(1), ra.get(1)]]
    aWf = ra.get(1); aWh = ra.get(1)
    eA = ra.get(3); eS = ra.get(3); eT = ra.get(4); eV = ra.get(6)
    XF = [ra.get(16, 4), ra.get(16, 4)]
    NB = 6
    WF = [ra.get(4, 4) for _ in range(NB)]
    ACC = ra.get(120, 4)
    nv = ra.n
    def accF(seg, t, i): return ACC + ((seg*2 + t)*4 + i)*4
    def accH(seg, i): return ACC + 96 + (seg*2 + i)*4
    sWave=20; sBr=21; sMt=22; sJ=23; sWm=24; sWn=25
    SX=28; SW=32; SWS=36
    sXo=40; sWo=41; sCnt=42; sRd=43; sWo2=44; sT=45; sT2=46; sXm0=48; sWm0=49; sNrX=50; sNrW=51
    sXp=52; sXn=53; sWp=54; sWn2=55; sSc=56
    a.op("s_cmp_ge_u32 s2, 256")
    a.op(f"s_cbranch_scc1 {name}_end")
    a.op("s_load_dwordx4 s[4:7], s[0:1], 0")
    a.op("s_load_dwordx4 s[8:11], s[0:1], 24")
    a.op("s_load_dwordx2 s[12:13], s[0:1], 72")
    a.op(f"v_and_b32 v{vl}, 63, v0")
    a.op(f"v_lshrrev_b32 v{t0}, 6, v0")
    a.op(f"s_and_b32 s14, s2, 7")
    a.op(f"s_lshr_b32 s15, s2, 3")
    a.op(f"v_readfirstlane_b32 s{sWave}, v{t0}")
    a.op(f"s_lshr_b32 s{sBr}, s14, 2")
    a.op(f"s_bfe_u32 s16, s14, 0x10001")
    a.op(f"s_lshl_b32 s16, s16, 3")
    a.op(f"s_and_b32 s17, s15, 7")
    a.op(f"s_add_u32 s{sMt}, s16, s17")
    a.op(f"s_and_b32 s16, s14, 1")
    a.op(f"s_lshl_b32 s16, s16, 2")
    a.op(f"s_lshr_b32 s17, s15, 3")
    a.op(f"s_add_u32 s{sJ}, s16, s17")
    a.op(f"s_and_b32 s{sWm}, s{sWave}, 1")
    a.op(f"s_lshr_b32 s{sWn}, s{sWave}, 1")
    a.op(f"v_lshrrev_b32 v{t0}, 3, v{vl}")
    a.op(f"v_and_b32 v{t1}, 7, v{vl}")
    a.op(f"v_xor_b32 v{t1}, v{t1}, v{t0}")
    a.op(f"s_lshl_b32 s16, s{sMt}, 7")
    a.op(f"s_lshl_b32 s17, s{sWave}, 5")
    a.op(f"s_add_u32 s16, s16, s17")
    a.op(f"v_add_u32 v{t0}, s16, v{t0}")
    a.op(f"v_mul_u32_u24 v{vxd}, 1280, v{t0}")
    a.op(f"v_lshl_add_u32 v{vxd}, v{t1}, 4, v{vxd}")
    for j in range(1, 4):
        a.op(f"v_add_u32 v{vxd+j}, {9216*j}, v{vxd}")
    a.op(f"v_cmp_lt_u32 vcc, 29, v{vl}")
    a.op(f"s_lshl_b32 s16, s{sWave}, 4")
    a.op(f"s_mul_i32 s16, s16, 3840")
    a.op(f"s_mul_i32 s17, s{sJ}, 480")
    a.op(f"s_add_u32 s16, s16, s17")
    a.op(f"v_lshlrev_b32 v{t0}, 4, v{vl}")
    a.op(f"v_mov_b32 v{t1}, {3840-480}")
    a.op(f"v_cndmask_b32 v{t1}, 0, v{t1}, vcc")
    a.op(f"v_add3_u32 v{t0}, v{t0}, v{t1}, s16")
    a.op(f"v_cmp_gt_u32 vcc, 60, v{vl}")
    a.op(f"v_mov_b32 v{t1}, 0x40000000")
    a.op(f"v_cndmask_b32 v{vwd}, v{t1}, v{t0}, vcc")
    rowc = [0, 2, 8, 10]
    for j in range(1, 4):
        a.op(f"v_add_u32 v{vwd+j}, {rowc[j]*3840 - WG_STRIDE*j}, v{vwd}")
    a.op(f"s_lshl_b32 s{sXm0}, s{sWave}, 12")
    a.op(f"s_mul_i32 s{sWm0}, s{sWave}, {8*WG_STRIDE}")
    a.op(f"s_add_u32 s{sWm0}, s{sWm0}, {LDS_W}")
    a.op("s_waitcnt lgkmcnt(0)")
    a.op(f"s_cmp_eq_u32 s{sBr}, 0")
    a.op("s_cselect_b32 s4, s4, s8")
    a.op("s_cselect_b32 s5, s5, s9")
    a.op("s_cselect_b32 s6, s6, s10")
    a.op("s_cselect_b32 s7, s7, s11")
    srd(a, SX, 4, 2048*1280)
    srd(a, SW, 6, 640*3840)
    def dma_x(j): return f"buffer_load_dwordx4 v{vxd+j}, s[{SX}:{SX+3}], s{sXo} offen offset:{1024*j} lds"
    def dma_w(j, hi): return f"buffer_load_dwordx4 v{vwd+j}, s[{SW}:{SW+3}], s{sWo2 if hi else sWo} offen offset:{WG_STRIDE*j} lds"
    for st in range(2):
        a.op(f"s_mov_b32 s{sXo}, {st*128}")
        a.op(f"s_add_u32 m0, s{sXm0}, {st*XSLOT}")
        a.op(f"s_mov_b32 s{sWo}, {st*245760}")
        for j in range(4): a.op(dma_x(j))
        a.op(f"s_add_u32 m0, s{sWm0}, {st*WSLOT}")
        a.op(f"s_mov_b32 s{sWo2}, {st*245760 + 4*3840}")
        for j in range(4): a.op(dma_w(j, 0))
        a.op(f"s_add_u32 m0, m0, {4*WG_STRIDE}")
        a.op("s_nop 0")
        for j in range(4): a.op(dma_w(j, 1))
    srd(a, SWS, 12, WS_SIZE)
    a.op(f"v_and_b32 v{t0}, 15, v{vl}")
    a.op(f"v_lshrrev_b32 v{t1}, 4, v{vl}")
    a.op(f"v_and_b32 v{t2}, 7, v{t0}")
    a.op(f"v_xor_b32 v{t2}, v{t2}, v{t1}")
    a.op(f"v_lshlrev_b32 v{t2}, 4, v{t2}")
    a.op(f"v_lshl_add_u32 v{t2}, v{t0}, 7, v{t2}")
    a.op(f"s_lshl_b32 s16, s{sWm}, 13")
    a.op(f"s_lshl_b32 s17, s{sWn}, 12")
    a.op(f"s_add_u32 s18, s16, s17")
    a.op(f"v_add_u32 v{aX[0][0]}, s18, v{t2}")
    a.op(f"s_xor_b32 s17, s17, 4096")
    a.op(f"s_add_u32 s18, s16, s17")
    a.op(f"v_add_u32 v{aX[1][0]}, s18, v{t2}")
    a.op(f"v_xor_b32 v{aX[0][1]}, 64, v{aX[0][0]}")
    a.op(f"v_xor_b32 v{aX[1][1]}, 64, v{aX[1][0]}")
    a.op(f"v_lshrrev_b32 v{t2}, 1, v{t1}")
    a.op(f"v_lshlrev_b32 v{t2}, 3, v{t2}")
    a.op(f"v_and_b32 v{t3}, 1, v{t1}")
    a.op(f"v_lshl_add_u32 v{t2}, v{t3}, 1, v{t2}")
    a.op(f"v_lshrrev_b32 v{t3}, 3, v{t0}")
    a.op(f"v_add_u32 v{t2}, v{t2}, v{t3}")
    a.op(f"v_mul_u32_u24 v{t2}, {WG_STRIDE}, v{t2}")
    a.op(f"v_bfe_u32 v{t3}, v{t0}, 2, 1")
    a.op(f"v_mul_u32_u24 v{t3}, 480, v{t3}")
    a.op(f"v_add_u32 v{t2}, v{t2}, v{t3}")
    a.op(f"v_and_b32 v{t3}, 3, v{t0}")
    a.op(f"v_lshl_add_u32 v{t2}, v{t3}, 3, v{t2}")
    a.op(f"v_add_u32 v{aWh}, {LDS_W}, v{t2}")
    a.op(f"s_mul_i32 s16, s{sWn}, 96")
    a.op(f"v_add_u32 v{aWf}, s16, v{aWh}")
    r = t0; g = t1
    a.op(f"s_lshl_b32 s16, s{sWm}, 6")
    a.op(f"s_lshl_b32 s17, s{sWn}, 5")
    for i in range(4):
        a.op(f"s_xor_b32 s18, s17, {16*i}")
        a.op(f"s_add_u32 s18, s18, s16")
        a.op(f"v_add_u32 v{eT+i}, s18, v{r}")
    tmp = [t2, t3, t4, t5, XF[0], XF[0]+1]
    for v in range(3):
        if v < 2:
            a.op(f"s_mul_i32 s18, s{sWn}, 12")
            a.op(f"s_add_u32 s18, s18, {4*v}")
        else:
            a.op(f"s_mov_b32 s18, 8")
        a.op(f"v_add_u32 v{tmp[0]}, s18, v{g}")
        a.op(f"v_mul_u32_u24 v{tmp[1]}, 13, v{tmp[0]}")
        a.op(f"v_lshrrev_b32 v{tmp[1]}, 6, v{tmp[1]}")
        a.op(f"v_mul_u32_u24 v{tmp[2]}, 5, v{tmp[1]}")
        a.op(f"v_sub_u32 v{tmp[2]}, v{tmp[0]}, v{tmp[2]}")
        a.op(f"v_mul_u32_u24 v{tmp[1]}, 5120, v{tmp[1]}")
        a.op(f"v_lshrrev_b32 v{tmp[3]}, 1, v{tmp[2]}")
        a.op(f"v_lshlrev_b32 v{tmp[3]}, 11, v{tmp[3]}")
        a.op(f"v_and_b32 v{tmp[4]}, 1, v{tmp[2]}")
        a.op(f"v_lshl_add_u32 v{tmp[3]}, v{tmp[4]}, 3, v{tmp[3]}")
        a.op(f"v_add_u32 v{eA+v}, v{tmp[1]}, v{tmp[3]}")
        a.op(f"v_cmp_eq_u32 vcc, 4, v{tmp[2]}")
        a.op(f"v_mov_b32 v{tmp[5]}, 16")
        a.op(f"s_lshl_b32 s19, s18, 2")
        a.op(f"v_cndmask_b32 v{eS+v}, v{tmp[5]}, 8, vcc")
        a.op(f"v_add_u32 v{tmp[0]}, s19, v{r}")
        a.op(f"v_mul_u32_u24 v{tmp[1]}, 205, v{tmp[0]}")
        a.op(f"v_lshrrev_b32 v{tmp[1]}, 12, v{tmp[1]}")
        a.op(f"v_mul_u32_u24 v{tmp[2]}, 20, v{tmp[1]}")
        a.op(f"v_sub_u32 v{tmp[2]}, v{tmp[0]}, v{tmp[2]}")
        a.op(f"v_mul_u32_u24 v{tmp[1]}, 5120, v{tmp[1]}")
        a.op(f"v_lshl_add_u32 v{tmp[1]}, v{tmp[2]}, 4, v{tmp[1]}")
        a.op(f"v_lshrrev_b32 v{tmp[3]}, 1, v{g}")
        a.op(f"v_mul_u32_u24 v{tmp[3]}, 320, v{tmp[3]}")
        a.op(f"v_and_b32 v{tmp[4]}, 1, v{g}")
        a.op(f"v_lshl_add_u32 v{tmp[3]}, v{tmp[4]}, 3, v{tmp[3]}")
        a.op(f"s_mul_i32 s19, s{sWm}, 2560")
        a.op(f"v_add3_u32 v{tmp[1]}, v{tmp[1]}, v{tmp[3]}, s19")
        a.op(f"s_mul_i32 s19, s{sWn}, 1280")
        a.op(f"v_add_u32 v{eV+2*v}, s19, v{tmp[1]}")
        a.op(f"s_sub_u32 s19, 1280, s19")
        a.op(f"v_add_u32 v{eV+2*v+1}, s19, v{tmp[1]}")
    for s in range(3):
        a.op(f"s_mul_i32 s18, s{sJ}, 3")
        a.op(f"s_add_u32 s18, s18, {s}")
        a.op(f"s_lshr_b32 s18, s18, 3")
        a.op(f"s_add_u32 s18, s18, s{sBr}")
        a.op(f"s_cmp_eq_u32 s18, 0")
        a.op(f"s_cselect_b32 s{sSc+2*s}, {f32hex(QSCALE)}, 1.0")
        a.op(f"s_mov_b32 s{sSc+2*s+1}, s{sSc+2*s}")
    for rr in range(XF[0], ACC + 120):
        a.op(f"v_mov_b32 v{rr}, 0")
    a.op(f"s_mov_b32 s{sCnt}, 0")
    a.op(f"s_mov_b32 s{sRd}, 0")
    a.op(f"s_mov_b32 s{sNrX}, {2048*1280}")
    a.op(f"s_mov_b32 s{sNrW}, {640*3840}")
    a.op(f"s_mov_b32 s{sXp}, {XSLOT}")
    a.op(f"s_mov_b32 s{sXn}, {-2*XSLOT & 0xffffffff}")
    a.op(f"s_mov_b32 s{sWp}, {WSLOT}")
    a.op(f"s_mov_b32 s{sWn2}, {-2*WSLOT & 0xffffffff}")
    a.op(f"s_add_u32 s{sXm0}, s{sXm0}, {2*XSLOT}")
    a.op(f"s_add_u32 s{sWm0}, s{sWm0}, {2*WSLOT}")
    a.op(f"s_mov_b32 s{sXo}, {2*128}")
    a.op(f"s_mov_b32 s{sWo}, {2*245760}")
    a.op(f"s_mov_b32 s{sWo2}, {2*245760 + 4*3840}")
    a.op("s_waitcnt vmcnt(12)")
    a.op("s_barrier")
    st_.stamp()

    groups = []
    for ks in range(2):
        for seg in range(3):
            groups += [(ks, seg, 'F', 0), (ks, seg, 'F', 1), (ks, seg, 'H', 0)]
    NG = 18
    NPREV = 4
    order = list(range(NG - NPREV, NG)) + list(range(0, NG - NPREV))
    def gsize(gi): return 4 if groups[gi][2] == 'F' else 2
    start = {}; p = 0
    for k_, gi in enumerate(order):
        start[(gi, k_ < NPREV)] = p; p += gsize(gi)
    NM = p
    def w_reads(gi):
        ks, seg, kind, t = groups[gi]
        buf = WF[gi % NB]
        areg = aWf if kind == 'F' else aWh
        off = seg*160 + (t*32 if kind == 'F' else 64) + ks*16*WG_STRIDE
        return [f"ds_read_b64_tr_b16 v[{buf}:{buf+1}], v{areg} offset:{off}",
                f"ds_read_b64_tr_b16 v[{buf+2}:{buf+3}], v{areg} offset:{off + 4*WG_STRIDE}"]
    def x_reads(ks):
        return [f"ds_read_b128 v[{XF[ks]+4*i}:{XF[ks]+4*i+3}], v{aX[i>>1][ks]} offset:{(i&1)*2048}" for i in range(4)]
    def mfmas(gi, orient):
        ks, seg, kind, t = groups[gi]
        buf = WF[gi % NB]
        out = []
        for i in (range(4) if kind == 'F' else range(2)):
            acc = accF(seg, t, i) if kind == 'F' else accH(seg, i)
            x = XF[ks] + 4*i
            if orient[seg] == 'T':
                out.append(f"v_mfma_f32_16x16x32_bf16 v[{acc}:{acc+3}], v[{buf}:{buf+3}], v[{x}:{x+3}], v[{acc}:{acc+3}]")
            else:
                out.append(f"v_mfma_f32_16x16x32_bf16 v[{acc}:{acc+3}], v[{x}:{x+3}], v[{buf}:{buf+3}], v[{acc}:{acc+3}]")
        return out

    def gen_variant(orient, tag):
        def execstart(gi):
            return start[(gi, False)] if gi < NG - NPREV else NM
        def prevstart(gi): return start[(gi, True)]
        lds = []
        xr0 = x_reads(0); xr1 = x_reads(1)
        for m in range(NG):
            pm = m - NB
            if pm < 0:
                pg = pm + NG
                e = (prevstart(pg) + gsize(pg)) if pg >= NG - NPREV else 0
            else:
                e = execstart(pm) + gsize(pm)
            dl = (execstart(m) - 4) if m < NG - NPREV else NM - 4
            if m == 0:
                for q, s in enumerate(xr0): lds.append(Item(s, 0, ('x0', q), deadline=execstart(0) - 4))
            rd = w_reads(m)
            lds.append(Item(rd[0], e, ('wa', m), deadline=dl))
            lds.append(Item(rd[1], e, ('w', m), deadline=dl))
            if m == 2:
                e1 = prevstart(NG - 1) + gsize(NG - 1)
                for q, s in enumerate(xr1): lds.append(Item(s, e1, ('x1', q), deadline=execstart(9) - 4))
        dma = []
        sp = 4
        dma.append(Item(f"s_mov_b32 m0, s{sXm0}", 1))
        for j in range(4): dma.append(Item(dma_x(j), 2 + sp*j))
        dma.append(Item(f"s_mov_b32 m0, s{sWm0}", 2 + sp*3 + 1))
        for j in range(4): dma.append(Item(dma_w(j, 0), 2 + sp*(4 + j)))
        dma.append(Item(f"s_add_u32 m0, m0, {4*WG_STRIDE}", 2 + sp*7 + 1))
        for j in range(4): dma.append(Item(dma_w(j, 1), 2 + sp*(8 + j)))
        if opts.get('nodma'): dma = [d for d in dma if not d.txt.startswith('buffer')]
        e_end = 2 + sp*11 + 1
        ctl = [Item(f"s_cmp_lt_u32 s{sCnt}, {NST-2}", 0),
               Item(f"s_cselect_b32 s{SX+2}, s{sNrX}, 0", 0),
               Item(f"s_cselect_b32 s{SW+2}, s{sNrW}, 0", 0),
               Item(f"s_add_u32 s{sRd}, s{sRd}, 1", 20),
               Item(f"s_cmp_eq_u32 s{sRd}, 3", 20),
               Item(f"s_cselect_b32 s{sRd}, 0, s{sRd}", 20),
               Item(f"s_cselect_b32 s{sT}, s{sXn}, s{sXp}", 20),
               Item(f"s_cselect_b32 s{sT2}, s{sWn2}, s{sWp}", 20)]
        for ab in range(2):
            for ks in range(2):
                ctl.append(Item(f"v_add_u32 v{aX[ab][ks]}, s{sT}, v{aX[ab][ks]}", 30))
        ctl2 = [Item(f"s_add_u32 s{sXo}, s{sXo}, 128", e_end),
                Item(f"s_add_u32 s{sWo}, s{sWo}, 245760", e_end),
                Item(f"s_add_u32 s{sWo2}, s{sWo2}, 245760", e_end),
                Item(f"s_cmp_eq_u32 s{sRd}, 1", e_end),
                Item(f"s_cselect_b32 s{sT}, s{sXn}, s{sXp}", e_end),
                Item(f"s_add_u32 s{sXm0}, s{sXm0}, s{sT}", e_end),
                Item(f"s_cmp_eq_u32 s{sRd}, 1", e_end),
                Item(f"s_cselect_b32 s{sT}, s{sWn2}, s{sWp}", e_end),
                Item(f"s_add_u32 s{sWm0}, s{sWm0}, s{sT}", e_end),
                Item(f"s_add_u32 s{sCnt}, s{sCnt}, 1", e_end)]
        fixed = {}
        body_m = []; needs = {}
        for k_, gi in enumerate(order):
            prev = k_ < NPREV
            ms = mfmas(gi, orient)
            i0 = len(body_m)
            if opts.get('nomfma'): ms = [None]*len(ms)
            body_m += ms
            if not prev:
                needs[i0] = [('w', gi)] + ([('x0', 3)] if gi == 0 else []) + ([('x1', 3)] if gi == 9 else [])
                fixed[i0] = 1
        placed = schedule(NM, [ctl[:3], dma, lds, ctl[3:], ctl2], cap=2, fixed=fixed)
        tail = [f"v_add_u32 v{aWf}, s{sT2}, v{aWf}", f"v_add_u32 v{aWh}, s{sT2}, v{aWh}"]
        lg = LgkmTracker(Asm()); ids = {}
        emit_scheduled(lg.asm, body_m, placed, needs, lg, ids)
        a(".p2align 6")
        a.label(f"{name}_loop_{tag}")
        lg.asm = a; lg.done = lg.issued
        emit_scheduled(a, body_m, placed, needs, lg, ids)
        for s in tail: a.op(s)
        a.op(f"s_cmp_lt_u32 s{sCnt}, {NST}")
        a.op("s_waitcnt vmcnt(12) lgkmcnt(0)")
        a.op("s_barrier")
        a.op(f"s_cbranch_scc1 {name}_loop_{tag}")
        for gi in range(NG - NPREV, NG):
            for s in mfmas(gi, orient): a.op(s)
        st_n = st_.n
        st_.stamp()
        a.op("s_waitcnt vmcnt(0)")
        a.op("s_barrier")
        pk = XF[0]; ad = XF[0] + 8
        cnt = 0
        for seg in range(3):
            for v in range(3):
                for i in (range(4) if v < 2 else range(2)):
                    acc = accF(seg, v, i) if v < 2 else accH(seg, i)
                    p_ = pk + 2*(cnt % 4); ad_ = ad + (cnt % 4); cnt += 1
                    if orient[seg] == 'T':
                        a.op(f"v_pk_mul_f32 v[{acc}:{acc+1}], v[{acc}:{acc+1}], s[{sSc+2*seg}:{sSc+2*seg+1}]")
                        a.op(f"v_pk_mul_f32 v[{acc+2}:{acc+3}], v[{acc+2}:{acc+3}], s[{sSc+2*seg}:{sSc+2*seg+1}]")
                        a.op(f"v_mad_u32_u24 v{ad_}, v{eT+i}, v{eS+v}, v{eA+v}")
                    a.op(f"v_cvt_pk_bf16_f32 v{p_}, v{acc}, v{acc+1}")
                    a.op(f"v_cvt_pk_bf16_f32 v{p_+1}, v{acc+2}, v{acc+3}")
                    if orient[seg] == 'T':
                        a.op(f"ds_write_b64 v{ad_}, v[{p_}:{p_+1}] offset:{seg*20480}")
                    else:
                        a.op(f"ds_write_b64 v{eV+2*v+(i>>1)}, v[{p_}:{p_+1}] offset:{seg*20480 + (i&1)*640}")
        a.op("s_waitcnt lgkmcnt(0)")
        a.op("s_barrier")
        st_.stamp()
        a.op(f"s_mul_i32 s17, s{sBr}, {BR_STRIDE}")
        a.op(f"s_mul_i32 s18, s{sWave}, 5120")
        a.op(f"v_lshlrev_b32 v{t0}, 4, v{vl}")
        a.op(f"v_add_u32 v{t1}, s18, v{t0}")
        CP = ACC
        for n in range(15):
            a.op(f"ds_read_b128 v[{CP+4*n}:{CP+4*n+3}], v{t1} offset:{(n//5)*20480 + (n%5)*1024}")
        for seg in range(3):
            a.op(f"s_mul_i32 s14, s{sJ}, 3")
            a.op(f"s_add_u32 s14, s14, {seg}")
            a.op(f"s_and_b32 s15, s14, 7")
            a.op(f"s_lshl_b32 s15, s15, 2")
            a.op(f"s_add_u32 s15, s15, s{sWave}")
            if orient[seg] == 'T':
                a.op(f"s_lshr_b32 s14, s14, 3")
                a.op(f"s_mul_i32 s18, s15, {QB}")
                a.op(f"s_lshl_b32 s18, s18, s14")
                a.op(f"s_mul_i32 s14, s14, {WS_KV - WS_Q}")
                a.op(f"s_add_u32 s14, s14, s17")
                a.op(f"s_add_u32 s14, s14, s18")
                a.op(f"s_lshl_b32 s19, s{sMt}, 11")
                a.op(f"s_add_u32 s18, s14, s19")
                a.op(f"s_lshl_b32 s19, s{sMt}, 10")
                a.op(f"s_add_u32 s26, s14, s19")
                for pc in range(5):
                    n = seg*5 + pc
                    if pc < 4: a.op(f"s_add_u32 s27, s18, {WS_Q + (pc >> 1)*32768 + (pc & 1)*1024}")
                    else: a.op(f"s_add_u32 s27, s26, {WS_Q + OFF_T}")
                    a.op(f"s_waitcnt lgkmcnt({14-n})")
                    a.op(f"buffer_store_dwordx4 v[{CP+4*n}:{CP+4*n+3}], v{t0}, s[{SWS}:{SWS+3}], s27 offen {opts.get('stflags','')}")
            else:
                a.op(f"s_mul_i32 s18, s15, {KVB}")
                a.op(f"s_mul_i32 s19, s{sMt}, 5120")
                a.op(f"s_add_u32 s18, s18, s19")
                a.op(f"s_add_u32 s18, s18, s17")
                for pc in range(5):
                    n = seg*5 + pc
                    a.op(f"s_add_u32 s27, s18, {WS_KV + OFF_V + pc*1024}")
                    a.op(f"s_waitcnt lgkmcnt({14-n})")
                    a.op(f"buffer_store_dwordx4 v[{CP+4*n}:{CP+4*n+3}], v{t0}, s[{SWS}:{SWS+3}], s27 offen {opts.get('stflags','')}")
        st_.stamp()
        if stamps:
            a.op("s_waitcnt vmcnt(0)")
            st_.stamp()
            st_.dump(SWS, sWave, t0)
            st_.n = st_n
        a.op("s_endpgm")

    a.op(f"s_cmp_ge_u32 s{sJ}, 6")
    a.op(f"s_cbranch_scc1 {name}_vd")
    a.op(f"s_cmp_eq_u32 s{sJ}, 5")
    a.op(f"s_cbranch_scc1 {name}_vm")
    gen_variant("TTT", "t")
    a.label(f"{name}_vm")
    gen_variant("TDD", "m")
    a.label(f"{name}_vd")
    gen_variant("DDD", "d")
    a.label(f"{name}_end")
    a.op("s_endpgm")
    return nv
```

```python
from common import *
from attn_loop import *
import struct
def f32hex(x): return "0x%08x" % struct.unpack("<I", struct.pack("<f", x))[0]
K2_LDS = 163840

def gen_k2(a, name="k2_kernel", stamps=False, opts={}):
    kernel_header(a, name)
    st_ = Stamps(a, stamps, slot=1)
    st_.stamp()
    vl = 1; t0 = 2; t1 = 3; t2 = 4; t3 = 5
    R = AttnRegs(8)
    X = R.end
    mA = X; mB = X + 1
    x0 = X + 2
    nv = x0 + 16
    sWave=20; sHead=21; sQb=22; sH=23; sQs=24; sKV=25; sIt=26; sPrioIt=27
    SWS=28; sEX=40; sT=42; sT2=43; sT3=44; sQ=45; sTok=46
    a.op("s_cmp_ge_u32 s2, 256")
    a.op(f"s_cbranch_scc1 {name}_end")
    a.op("s_load_dwordx2 s[12:13], s[0:1], 72")
    a.op(f"v_and_b32 v{vl}, 63, v0")
    a.op(f"v_lshrrev_b32 v{t0}, 6, v0")
    a.op(f"s_and_b32 s14, s2, 7")
    a.op(f"s_lshl_b32 s14, s14, 2")
    a.op(f"v_readfirstlane_b32 s{sWave}, v{t0}")
    a.op(f"s_bfe_u32 s15, s2, 0x20003")
    a.op(f"s_add_u32 s{sHead}, s14, s15")
    a.op(f"s_lshr_b32 s{sQb}, s2, 5")
    a.op(f"s_lshr_b32 s{sH}, s{sWave}, 2")
    a.op(f"s_and_b32 s{sQs}, s{sWave}, 3")
    a.op(f"s_mul_i32 s{sKV}, s{sHead}, {KVB}")
    a.op(f"s_add_u32 s{sKV}, s{sKV}, {WS_KV}")
    a.op(f"s_mul_i32 s{sQ}, s{sHead}, {QB}")
    a.op(f"s_add_u32 s{sQ}, s{sQ}, {WS_Q}")
    a.op(f"s_lshl_b32 s{sTok}, s{sQb}, 8")
    a.op(f"s_lshl_b32 s14, s{sQs}, 6")
    a.op(f"s_add_u32 s{sTok}, s{sTok}, s14")
    a.op(f"v_lshlrev_b32 v{t0}, 4, v{vl}")
    a.op(f"v_and_b32 v{t1}, 31, v{vl}")
    a.op(f"v_add_u32 v{t1}, s{sTok}, v{t1}")
    a.op(f"v_lshrrev_b32 v{t2}, 5, v{vl}")
    a.op(f"v_lshlrev_b32 v{t3}, 15, v{t2}")
    a.op(f"v_lshl_add_u32 v{t3}, v{t1}, 4, v{t3}")
    a.op(f"v_lshlrev_b32 v{t1}, 3, v{t1}")
    a.op("s_waitcnt lgkmcnt(0)")
    srd(a, SWS, 12, WS_SIZE)
    a.op(f"s_add_u32 s{sT}, s{sQ}, {OFF_T}")
    a.op(f"buffer_load_dwordx4 v[{R.Qm[0]}:{R.Qm[0]+3}], v{t3}, s[{SWS}:{SWS+3}], s{sQ} offen")
    a.op(f"buffer_load_dwordx4 v[{R.Qm[1]}:{R.Qm[1]+3}], v{t3}, s[{SWS}:{SWS+3}], s{sQ} offen offset:512")
    a.op(f"buffer_load_dwordx2 v[{R.Qlo[0]}:{R.Qlo[0]+1}], v{t1}, s[{SWS}:{SWS+3}], s{sT} offen")
    a.op(f"buffer_load_dwordx2 v[{R.Qlo[1]}:{R.Qlo[1]+1}], v{t1}, s[{SWS}:{SWS+3}], s{sT} offen offset:256")
    def piece(H, sc, i):
        T0 = H*1024 + sc*256
        if i < 4: return T0*16 + i*1024
        if i < 8: return 32768 + T0*16 + (i-4)*1024
        if i < 10: return 65536 + T0*8 + (i-8)*1024
        return 81920 + (T0//32)*1280 + (i-10)*1024
    for qs in range(4):
        if qs < 3:
            a.op(f"s_cmp_lg_u32 s{sQs}, {qs}")
            a.op(f"s_cbranch_scc1 {name}_dma{qs+1}")
        a.op(f"s_mul_i32 s14, s{sH}, 16384")
        a.op(f"s_mul_i32 s15, s{sH}, 8192")
        a.op(f"s_mul_i32 s16, s{sH}, 40960")
        for sc in range(4):
            last = None
            for i in range(5*qs, 5*qs + 5):
                ad = piece(0, sc, i)
                hs = 14 if i < 8 else (15 if i < 10 else 16)
                if last is not None and last[1] == hs and 0 < ad - last[0] < 4096:
                    a.op(f"buffer_load_dwordx4 v{t0}, s[{SWS}:{SWS+3}], s{sT} offen offset:{ad - last[0]} lds")
                else:
                    a.op(f"s_add_u32 m0, s{hs}, {ad}")
                    a.op(f"s_add_u32 s{sT}, m0, s{sKV}")
                    a.op(f"buffer_load_dwordx4 v{t0}, s[{SWS}:{SWS+3}], s{sT} offen lds")
                    last = (ad, hs)
        if qs < 3: a.op(f"s_branch {name}_dmadone")
        if qs < 3: a.label(f"{name}_dma{qs+1}")
    a.label(f"{name}_dmadone")
    a.op(f"v_and_b32 v{t1}, 31, v{vl}")
    a.op(f"v_lshrrev_b32 v{t2}, 5, v{vl}")
    a.op(f"v_lshlrev_b32 v{R.aKm}, 15, v{t2}")
    a.op(f"v_lshl_add_u32 v{R.aKm}, v{t1}, 4, v{R.aKm}")
    a.op(f"s_lshl_b32 s14, s{sH}, 14")
    a.op(f"v_add_u32 v{R.aKm}, s14, v{R.aKm}")
    a.op(f"s_lshl_b32 s14, s{sH}, 13")
    a.op(f"s_add_u32 s14, s14, 65536")
    a.op(f"v_lshlrev_b32 v{R.aKt}, 3, v{vl}")
    a.op(f"v_add_u32 v{R.aKt}, s14, v{R.aKt}")
    a.op(f"v_mul_u32_u24 v{R.aV}, 320, v{t2}")
    a.op(f"v_lshl_add_u32 v{R.aV}, v{t1}, 4, v{R.aV}")
    a.op(f"s_mul_i32 s14, s{sH}, 40960")
    a.op(f"s_add_u32 s14, s14, 81920")
    a.op(f"v_add_u32 v{R.aV}, s14, v{R.aV}")
    a.op(f"s_mov_b32 s{sEX}, 0x000fffff")
    a.op(f"s_mov_b32 s{sEX+1}, 0x000fffff")
    a.op(f"v_mov_b32 v{R.idx}, 0xdddd")
    a.op(f"v_cmp_eq_u32 vcc, 20, v{t1}")
    a.op(f"v_mov_b32 v{t3}, 0x3f803f80")
    a.op(f"v_cndmask_b32 v{t3}, 0, v{t3}, vcc")
    for buf in R.V0 + R.V1:
        for i in range(4): a.op(f"v_mov_b32 v{buf+i}, v{t3}")
    for q in range(2):
        for i in range(16): a.op(f"v_mov_b32 v{R.O[q]+i}, 0")
    for i in range(8, 16): a.op(f"v_mov_b32 v{R.S[3]+i}, 0")
    a.op(f"v_mov_b32 v{mA}, 0")
    a.op(f"v_mov_b32 v{mB}, 0")
    a.op(f"s_cmp_eq_u32 s{sH}, 0")
    a.op(f"s_cselect_b32 s{sPrioIt}, 3, 99")
    a.op(f"s_cbranch_scc1 {name}_p2")
    a.op("s_setprio 1")
    a.op(f"s_branch {name}_p3")
    a.label(f"{name}_p2")
    a.op("s_setprio 2")
    a.label(f"{name}_p3")
    a.op("s_waitcnt vmcnt(20)")
    a.op(f"v_cmp_gt_u32 vcc, 32, v{vl}")
    for q in range(2):
        for i in range(2):
            a.op(f"v_cndmask_b32 v{R.Qhi[q]+i}, v{R.Qlo[q]+i}, 0, vcc")
            a.op(f"v_cndmask_b32 v{R.Qlo[q]+i}, 0, v{R.Qlo[q]+i}, vcc")
    a.op("s_waitcnt vmcnt(15)")
    a.op("s_barrier")
    st_.stamp()
    def prologue_reads():
        rd_km(a, R, 0, 0); rd_km(a, R, 1, 0); rd_kt(a, R, 0, 0)
        a.op(f"s_mov_b64 exec, s[{sEX}:{sEX+1}]")
        rd_v(a, R, 0, 0, 0); rd_v(a, R, 0, 1, 0)
        a.op("s_mov_b64 exec, -1")
        a.op("s_waitcnt lgkmcnt(0)")
    prologue_reads()
    qk_main(a, R, 0, 0); qk_tail(a, R, 0, 0)
    a.op("s_nop 7"); a.op("s_nop 3")
    a.op(f"s_mov_b32 s{sIt}, 0")
    def hook_bar():
        a.op(f"s_cmp_lg_u32 s{sIt}, 0")
        a.op(f"s_cbranch_scc1 {name}_nobar")
        a.op("s_waitcnt vmcnt(0)")
        a.op("s_barrier")
        a.label(f"{name}_nobar")
    def hook_prio():
        a.op(f"s_cmp_lg_u32 s{sIt}, s{sPrioIt}")
        a.op(f"s_cbranch_scc1 {name}_noprio")
        a.op("s_setprio 0")
        a.label(f"{name}_noprio")
    a(".p2align 6")
    a.label(f"{name}_loop")
    loop_body(a, R, {'sexec': sEX}, hooks={opts.get('barslot', 8): hook_bar, opts.get('prioslot', 6): hook_prio})
    a.op(f"v_add_u32 v{R.aKm}, 4096, v{R.aKm}")
    a.op(f"v_add_u32 v{R.aKt}, 2048, v{R.aKt}")
    a.op(f"v_add_u32 v{R.aV}, 10240, v{R.aV}")
    a.op(f"s_add_u32 s{sIt}, s{sIt}, 1")
    a.op(f"s_cmp_lt_u32 s{sIt}, 4")
    a.op(f"s_cbranch_scc1 {name}_loop")
    pv(a, R, 63, 1)
    a.op("s_waitcnt lgkmcnt(0)")
    a.op("s_nop 7"); a.op("s_nop 7")
    st_.stamp()
    a.op(f"v_mov_b32 v{x0}, 0")
    a.op(f"v_mov_b32 v{x0+1}, 0")
    a.op(f"s_mov_b32 s14, 0"); a.op(f"s_mov_b32 s15, 0")
    for q in range(2):
        for i in range(0, 12, 2):
            a.op(f"v_pk_fma_f32 v[{x0}:{x0+1}], v[{R.O[q]+i}:{R.O[q]+i+1}], s[14:15], v[{x0}:{x0+1}]")
    a.op(f"v_add_f32 v{x0}, v{x0}, v{x0+1}")
    a.op(f"v_cmp_u_f32 s[16:17], v{x0}, v{x0}")
    a.op(f"s_mov_b32 s14, {f32hex(2.0**-24)}")
    a.op(f"s_mov_b32 s15, {f32hex(2.0**100)}")
    a.op(f"v_min_f32 v{x0+2}, v{R.O[0]+8}, v{R.O[1]+8}")
    a.op(f"v_max_f32 v{x0+3}, v{R.O[0]+8}, v{R.O[1]+8}")
    a.op(f"v_cmp_gt_f32 s[18:19], s14, v{x0+2}")
    a.op(f"v_cmp_lt_f32 vcc, s15, v{x0+3}")
    a.op("s_nop 1")
    a.op("s_or_b64 s[18:19], s[18:19], vcc")
    a.op("s_and_b32 s18, s18, 0")
    a.op("s_or_b64 s[16:17], s[16:17], s[18:19]")
    if opts.get('force_fallback'): a.op("s_mov_b64 s[16:17], -1")
    a.op("s_cmp_eq_u64 s[16:17], 0")
    a.op(f"s_cbranch_scc1 {name}_ok")
    a.op(f"v_subrev_u32 v{R.aKm}, {4*4096}, v{R.aKm}")
    a.op(f"v_subrev_u32 v{R.aKt}, {4*2048}, v{R.aKt}")
    a.op(f"v_subrev_u32 v{R.aV}, {4*10240}, v{R.aV}")
    a.op(f"v_mov_b32 v{mA}, 0xff800000")
    a.op(f"v_mov_b32 v{mB}, 0xff800000")
    fK = x0 + 4; fT = x0 + 5; fV = x0 + 6
    def fb_qk():
        a.op(f"ds_read_b128 {vr(R.Km[0],4)}, {vr(fK)}")
        a.op(f"ds_read_b128 {vr(R.Km[1],4)}, {vr(fK)} offset:512")
        a.op(f"ds_read_b64 {vr(R.Kt[0],2)}, {vr(fT)}")
        a.op("s_waitcnt lgkmcnt(0)")
        for u in range(2):
            for q in range(2):
                S = R.S[2*u + q]
                a.op(f"v_mfma_f32_32x32x16_bf16 {vr(S,16)}, {vr(R.Km[u],4)}, {vr(R.Qm[q],4)}, 0")
                a.op(f"v_mfma_f32_32x32x8bf16_1k {vr(S,16)}, {vr(R.Kt[0],2)}, {vr((R.Qhi if u else R.Qlo)[q],2)}, {vr(S,16)}")
        a.op("s_nop 7"); a.op("s_nop 7")
    a.op(f"v_mov_b32 v{fK}, v{R.aKm}"); a.op(f"v_mov_b32 v{fT}, v{R.aKt}")
    a.op(f"s_mov_b32 s{sIt}, 0")
    a.label(f"{name}_fb1")
    fb_qk()
    for u in range(2):
        for q in range(2):
            S = R.S[2*u + q]; m = mA if q == 0 else mB
            for i in range(0, 16, 2):
                a.op(f"v_max3_f32 v{m}, v{S+i}, v{S+i+1}, v{m}")
    a.op(f"v_add_u32 v{fK}, 1024, v{fK}"); a.op(f"v_add_u32 v{fT}, 512, v{fT}")
    a.op(f"s_add_u32 s{sIt}, s{sIt}, 1")
    a.op(f"s_cmp_lt_u32 s{sIt}, 16")
    a.op(f"s_cbranch_scc1 {name}_fb1")
    for m in (mA, mB):
        a.op(f"v_mov_b32 v{x0}, v{m}")
        a.op(f"v_mov_b32 v{x0+1}, v{m}")
        a.op("s_nop 1")
        a.op(f"v_permlane32_swap_b32 v{x0}, v{x0+1}")
        a.op("s_nop 1")
        a.op(f"v_max_f32 v{m}, v{x0}, v{x0+1}")
    for q in range(2):
        for i in range(16): a.op(f"v_mov_b32 v{R.O[q]+i}, 0")
    a.op(f"v_mov_b32 v{fK}, v{R.aKm}"); a.op(f"v_mov_b32 v{fT}, v{R.aKt}"); a.op(f"v_mov_b32 v{fV}, v{R.aV}")
    a.op(f"s_mov_b32 s{sIt}, 0")
    a.label(f"{name}_fb2")
    a.op(f"s_mov_b64 exec, s[{sEX}:{sEX+1}]")
    for u in range(2):
        a.op(f"ds_read_b128 {vr(R.V0[u],4)}, {vr(fV)} offset:{u*1280}")
        a.op(f"ds_read_b128 {vr(R.V1[u],4)}, {vr(fV)} offset:{u*1280+640}")
    a.op("s_mov_b64 exec, -1")
    fb_qk()
    for u in range(2):
        for q in range(2):
            S = R.S[2*u + q]; m = mA if q == 0 else mB
            for i in range(16):
                a.op(f"v_sub_f32 v{S+i}, v{S+i}, v{m}")
            for i in range(16):
                a.op(f"v_exp_f32 v{S+i}, v{S+i}")
            a.op("s_nop 1")
            a.op(f"v_smfmac_f32_32x32x32_bf16 {vr(R.O[q],16)}, {vr(R.V0[u],4)}, {vr(S,8)}, {vr(R.idx)}")
            a.op(f"v_smfmac_f32_32x32x32_bf16 {vr(R.O[q],16)}, {vr(R.V1[u],4)}, {vr(S+8,8)}, {vr(R.idx)}")
    a.op(f"v_add_u32 v{fK}, 1024, v{fK}"); a.op(f"v_add_u32 v{fT}, 512, v{fT}"); a.op(f"v_add_u32 v{fV}, 2560, v{fV}")
    a.op(f"s_add_u32 s{sIt}, s{sIt}, 1")
    a.op(f"s_cmp_lt_u32 s{sIt}, 16")
    a.op(f"s_cbranch_scc1 {name}_fb2")
    a.op("s_nop 7"); a.op("s_nop 7")
    a.label(f"{name}_ok")
    a.op("s_setprio 0")
    a.op("s_barrier")
    a.op(f"s_cmp_eq_u32 s{sH}, 0")
    a.op(f"s_cbranch_scc1 {name}_noswap")
    for i in range(12):
        a.op(f"v_swap_b32 v{R.O[0]+i}, v{R.O[1]+i}")
    a.op(f"v_swap_b32 v{mA}, v{mB}")
    a.label(f"{name}_noswap")
    a.op(f"s_lshl_b32 s14, s{sWave}, 12")
    a.op(f"v_lshl_add_u32 v{t0}, v{vl}, 4, s14")
    a.op(f"v_lshl_add_u32 v{t1}, v{vl}, 2, s14")
    for j in range(3):
        a.op(f"ds_write_b128 v{t0}, v[{R.O[1]+4*j}:{R.O[1]+4*j+3}] offset:{j*1024}")
    a.op(f"ds_write_b32 v{t1}, v{mB} offset:3072")
    a.op("s_waitcnt lgkmcnt(0)")
    a.op("s_barrier")
    a.op(f"v_xor_b32 v{t0}, 16384, v{t0}")
    a.op(f"v_xor_b32 v{t1}, 16384, v{t1}")
    for j in range(3):
        a.op(f"ds_read_b128 v[{R.O[1]+4*j}:{R.O[1]+4*j+3}], v{t0} offset:{j*1024}")
    a.op(f"ds_read_b32 v{mB}, v{t1} offset:3072")
    a.op(f"s_lshl_b32 s14, s{sH}, 5")
    a.op(f"s_add_u32 s14, s14, s{sTok}")
    a.op(f"v_and_b32 v{t2}, 31, v{vl}")
    a.op(f"v_add_u32 v{t2}, s14, v{t2}")
    a.op(f"v_lshlrev_b32 v{t2}, 4, v{t2}")
    a.op(f"v_lshrrev_b32 v{t3}, 5, v{vl}")
    a.op(f"s_mul_i32 s14, s{sHead}, 5")
    a.op(f"v_add_u32 v{t3}, s14, v{t3}")
    adr = [x0+4, x0+5, x0+6]
    for aa in range(3):
        a.op(f"v_add_u32 v{x0}, {2*aa}, v{t3}")
        a.op(f"v_lshrrev_b32 v{x0+1}, 1, v{x0}")
        a.op(f"v_lshlrev_b32 v{x0+1}, 15, v{x0+1}")
        a.op(f"v_and_b32 v{x0}, 1, v{x0}")
        a.op(f"v_lshl_add_u32 v{x0+1}, v{x0}, 3, v{x0+1}")
        a.op(f"v_add_u32 v{adr[aa]}, v{x0+1}, v{t2}")
    a.op(f"v_cmp_gt_u32 vcc, 32, v{vl}")
    a.op(f"v_mov_b32 v{x0}, 0x40000000")
    a.op(f"v_cndmask_b32 v{adr[2]}, v{x0}, v{adr[2]}, vcc")
    a.op("s_waitcnt lgkmcnt(0)")
    a.op(f"v_max_f32 v{x0}, v{mA}, v{mB}")
    a.op(f"v_sub_f32 v{x0+1}, v{mA}, v{x0}")
    a.op(f"v_sub_f32 v{x0+2}, v{mB}, v{x0}")
    a.op(f"v_exp_f32 v{x0+1}, v{x0+1}")
    a.op(f"v_exp_f32 v{x0+2}, v{x0+2}")
    a.op("s_nop 0")
    for i in range(12):
        a.op(f"v_mul_f32 v{R.O[0]+i}, v{R.O[0]+i}, v{x0+1}")
        a.op(f"v_fmac_f32 v{R.O[0]+i}, v{R.O[1]+i}, v{x0+2}")
    a.op(f"v_mov_b32 v{x0}, v{R.O[0]+8}")
    a.op(f"v_mov_b32 v{x0+1}, v{R.O[0]+8}")
    a.op("s_nop 1")
    a.op(f"v_permlane32_swap_b32 v{x0}, v{x0+1}")
    a.op("s_nop 1")
    a.op(f"v_rcp_f32 v{x0+1}, v{x0+1}")
    a.op("s_nop 0")
    for i in range(12):
        a.op(f"v_mul_f32 v{R.O[0]+i}, v{R.O[0]+i}, v{x0+1}")
    for j in range(6):
        a.op(f"v_cvt_pk_bf16_f32 v{R.O[1]+j}, v{R.O[0]+2*j}, v{R.O[0]+2*j+1}")
    for aa in range(3):
        a.op(f"buffer_store_dwordx2 v[{R.O[1]+2*aa}:{R.O[1]+2*aa+1}], v{adr[aa]}, s[{SWS}:{SWS+3}], s{sT3} offen")
    idx = len(a.lines) - 3
    a.lines.insert(idx, f"  s_mov_b32 s{sT3}, {WS_OI}")
    st_.stamp()
    if stamps:
        a.op("s_waitcnt vmcnt(0)")
        st_.stamp()
        st_.dump(SWS, sWave, t0)
    a.label(f"{name}_end")
    a.op("s_endpgm")
    return nv
```

```python
from common import *
K3_W = 102400
K3_LDS = K3_W + 20480

def gen_k3(a, name="k3_kernel", stamps=False, opts={}):
    kernel_header(a, name)
    st_ = Stamps(a, stamps, slot=2)
    st_.stamp()
    ra = RegAlloc(1)
    vl = ra.get(1); t0 = ra.get(1); t1 = ra.get(1); t2 = ra.get(1); t3 = ra.get(1); t4 = ra.get(1)
    vw = ra.get(5)
    vo = ra.get(1)
    vout = ra.get(5)
    aW = ra.get(1); aS = ra.get(1)
    NB = 4
    WF = [ra.get(4, 4) for _ in range(NB)]
    ACC = ra.get(40, 4)
    OF = ra.get(160, 4)
    nv = ra.n
    sWave=20; sBr=21; sMt=22; sNt=23; SO=28; SW=32; SOUT=36; sT=40; sT2=41
    a.op("s_cmp_ge_u32 s2, 256")
    a.op(f"s_cbranch_scc1 {name}_end")
    a.op("s_load_dwordx2 s[4:5], s[0:1], 16")
    a.op("s_load_dwordx2 s[6:7], s[0:1], 48")
    a.op("s_load_dwordx2 s[8:9], s[0:1], 56")
    a.op("s_load_dwordx2 s[12:13], s[0:1], 72")
    a.op(f"v_and_b32 v{vl}, 63, v0")
    a.op(f"v_lshrrev_b32 v{t0}, 6, v0")
    a.op(f"s_and_b32 s14, s2, 7")
    a.op(f"s_lshr_b32 s15, s2, 3")
    a.op(f"v_readfirstlane_b32 s{sWave}, v{t0}")
    a.op(f"s_lshr_b32 s{sBr}, s14, 2")
    a.op(f"s_and_b32 s16, s14, 3")
    a.op(f"s_lshl_b32 s16, s16, 2")
    a.op(f"s_and_b32 s17, s15, 3")
    a.op(f"s_add_u32 s{sMt}, s16, s17")
    a.op(f"s_lshr_b32 s{sNt}, s15, 2")
    a.op(f"s_lshl_b32 s16, s{sMt}, 7")
    a.op(f"s_lshl_b32 s17, s{sWave}, 5")
    a.op(f"s_add_u32 s16, s16, s17")
    a.op(f"v_and_b32 v{t0}, 15, v{vl}")
    a.op(f"v_add_u32 v{t0}, s16, v{t0}")
    a.op(f"v_lshrrev_b32 v{t1}, 4, v{vl}")
    a.op(f"v_lshlrev_b32 v{t1}, 15, v{t1}")
    a.op(f"v_lshl_add_u32 v{vo}, v{t0}, 4, v{t1}")
    a.op(f"s_mul_i32 s17, s{sNt}, 160")
    a.op(f"s_mul_i32 s18, s16, 2560")
    a.op(f"s_mul_i32 s19, s{sBr}, 1280")
    a.op(f"s_add_u32 s18, s18, s19")
    a.op(f"s_add_u32 s18, s18, s17")
    for m in range(5):
        a.op(f"v_add_u32 v{t0}, {64*m}, v{vl}")
        a.op(f"v_mul_u32_u24 v{t1}, 6554, v{t0}")
        a.op(f"v_lshrrev_b32 v{t1}, 16, v{t1}")
        a.op(f"v_mul_u32_u24 v{t2}, 10, v{t1}")
        a.op(f"v_sub_u32 v{t2}, v{t0}, v{t2}")
        a.op(f"v_lshlrev_b32 v{t2}, 4, v{t2}")
        a.op(f"v_mul_u32_u24 v{t3}, 2560, v{t1}")
        a.op(f"v_add3_u32 v{vout+m}, v{t3}, v{t2}, s18")
        a.op(f"v_and_b32 v{t3}, 4, v{t1}")
        a.op(f"v_and_b32 v{t4}, 8, v{t1}")
        a.op(f"v_and_b32 v{t1}, 0xfffffff3, v{t1}")
        a.op(f"v_lshl_or_b32 v{t1}, v{t3}, 1, v{t1}")
        a.op(f"v_lshrrev_b32 v{t4}, 1, v{t4}")
        a.op(f"v_or_b32 v{t1}, v{t4}, v{t1}")
        a.op(f"v_mul_u32_u24 v{t1}, 1280, v{t1}")
        a.op(f"v_add3_u32 v{vw+m}, v{t1}, v{t2}, s17")
        if 0 < m < 4: a.op(f"v_subrev_u32 v{vw+m}, {1024*m}, v{vw+m}")
    a.op("s_waitcnt lgkmcnt(0)")
    a.op(f"s_cmp_eq_u32 s{sBr}, 0")
    a.op("s_cselect_b32 s4, s4, s6")
    a.op("s_cselect_b32 s5, s5, s7")
    srd(a, SW, 4, 640*1280)
    srd(a, SO, 12, WS_SIZE)
    srd(a, SOUT, 8, 2048*2560)
    a.op(f"s_mul_i32 s{sT2}, s{sBr}, {OI_STRIDE}")
    a.op(f"s_add_u32 s{sT2}, s{sT2}, {WS_OI}")
    a.op(f"s_mul_i32 s42, s{sWave}, 40960")
    a.op(f"s_mul_i32 s43, s{sWave}, 5120")
    def issue_group(j):
        a.op(f"s_add_u32 s{sT}, s42, {j*4*40960}")
        a.op(f"s_add_u32 m0, s43, {j*4*5120}")
        for m in range(5):
            if m == 4:
                a.op("s_add_u32 m0, m0, 4096")
                a.op("s_nop 0")
                a.op(f"buffer_load_dwordx4 v{vw+m}, s[{SW}:{SW+3}], s{sT} offen lds")
            else:
                a.op(f"buffer_load_dwordx4 v{vw+m}, s[{SW}:{SW+3}], s{sT} offen offset:{1024*m} lds")
        for q in range(4):
            ks = 4*j + q
            a.op(f"s_add_u32 s{sT}, s{sT2}, {ks*131072}")
            for i in range(2):
                r = OF + (ks*2 + i)*4
                a.op(f"buffer_load_dwordx4 v[{r}:{r+3}], v{vo}, s[{SO}:{SO+3}], s{sT} offen offset:{256*i}")
    for j in range(4): issue_group(j)
    a.op(f"v_and_b32 v{t0}, 15, v{vl}")
    a.op(f"v_lshrrev_b32 v{t1}, 4, v{vl}")
    a.op(f"v_lshrrev_b32 v{t2}, 1, v{t1}")
    a.op(f"v_lshlrev_b32 v{t2}, 4, v{t2}")
    a.op(f"v_and_b32 v{t3}, 1, v{t1}")
    a.op(f"v_lshl_add_u32 v{t2}, v{t3}, 2, v{t2}")
    a.op(f"v_lshrrev_b32 v{t3}, 2, v{t0}")
    a.op(f"v_add_u32 v{t2}, v{t2}, v{t3}")
    a.op(f"v_mul_u32_u24 v{t2}, 160, v{t2}")
    a.op(f"v_and_b32 v{t3}, 3, v{t0}")
    a.op(f"v_lshl_add_u32 v{aW}, v{t3}, 3, v{t2}")
    a.op(f"s_mul_i32 s16, s{sWave}, 5120")
    a.op(f"s_add_u32 s16, s16, {K3_W}")
    a.op(f"v_mul_u32_u24 v{t2}, 160, v{t0}")
    a.op(f"v_lshl_add_u32 v{t2}, v{t1}, 3, v{t2}")
    a.op(f"v_add_u32 v{aS}, s16, v{t2}")
    for r in range(ACC, ACC + 40): a.op(f"v_mov_b32 v{r}, 0")
    st_.stamp()
    lg = LgkmTracker(a)
    groups = [(ks, c) for ks in range(20) for c in range(5)]
    LA = 2
    ids = {}
    aWcur = [aW, 0]
    def rd(gi):
        ks, c = groups[gi]
        buf = WF[gi % NB]
        off = ks*5120 + c*32
        reg = aW
        if off + 1280 >= 65536:
            reg = t4; off -= 51200
        a.op(f"ds_read_b64_tr_b16 v[{buf}:{buf+1}], v{reg} offset:{off}"); lg.issue()
        a.op(f"ds_read_b64_tr_b16 v[{buf+2}:{buf+3}], v{reg} offset:{off + 8*160}"); ids[gi] = lg.issue()
    a.op(f"v_add_u32 v{t4}, 51200, v{aW}")
    for gi in range(len(groups) + LA):
        if gi < len(groups):
            ks, c = groups[gi]
            if c == 0 and ks % 4 == 0:
                j = ks // 4
                a.op(f"s_waitcnt vmcnt({[39, 39, 26, 13, 0][j]})")
                a.op("s_barrier")
                if j == 0: issue_group(4)
            rd(gi)
        m = gi - LA
        if m >= 0:
            ks, c = groups[m]
            lg.need(ids[m])
            buf = WF[m % NB]
            for i in range(2):
                acc = ACC + (i*5 + c)*4
                o = OF + (ks*2 + i)*4
                a.op(f"v_mfma_f32_16x16x32_bf16 v[{acc}:{acc+3}], v[{buf}:{buf+3}], v[{o}:{o+3}], v[{acc}:{acc+3}]")
    st_.stamp()
    a.op("s_nop 7")
    pk = WF[0]
    cnt = 0
    for i in range(2):
        for c in range(5):
            acc = ACC + (i*5 + c)*4
            p_ = pk + 2*(cnt % 4); cnt += 1
            a.op(f"v_cvt_pk_bf16_f32 v{p_}, v{acc}, v{acc+1}")
            a.op(f"v_cvt_pk_bf16_f32 v{p_+1}, v{acc+2}, v{acc+3}")
            a.op(f"ds_write_b64 v{aS}, v[{p_}:{p_+1}] offset:{i*16*160 + c*32}")
    a.op(f"s_mul_i32 s16, s{sWave}, 5120")
    a.op(f"s_add_u32 s16, s16, {K3_W}")
    a.op(f"v_lshl_add_u32 v{t0}, v{vl}, 4, s16")
    a.op("s_waitcnt lgkmcnt(0)")
    for m in range(5):
        a.op(f"ds_read_b128 v[{OF+4*m}:{OF+4*m+3}], v{t0} offset:{m*1024}")
    for m in range(5):
        a.op(f"s_waitcnt lgkmcnt({4-m})")
        a.op(f"buffer_store_dwordx4 v[{OF+4*m}:{OF+4*m+3}], v{vout+m}, s[{SOUT}:{SOUT+3}], 0 offen")
    st_.stamp()
    if stamps:
        a.op("s_waitcnt vmcnt(0)")
        st_.stamp()
        st_.dump(SO, sWave, t0)
    a.label(f"{name}_end")
    a.op("s_endpgm")
    return nv
```

```python
from common import *
import struct
def f32hex(x): return "0x%08x" % struct.unpack("<I", struct.pack("<f", x))[0]
LOG2E = 1.4426950408889634
NPART = 8
PART_BYTES = 21*40*4

class PhiRegs:
    def __init__(self, ra):
        self.A1m = ra.get(4, 2); self.A2m = ra.get(4, 2); self.A1t = ra.get(2, 2); self.A2t = ra.get(2, 2)
        self.Xm = ra.get(4, 2); self.Xt = ra.get(2, 2)
        self.D1 = ra.get(16, 2); self.D2 = ra.get(16, 2)
        self.P = ra.get(12, 2)
        self.t = ra.get(6, 2)

def build_phi_operands(a, F, vl, sHead, SPHI, lds_base_s, tmp):
    t0, t1, t2, t3, t4, t5 = tmp
    a.op(f"s_mul_i32 s14, s{sHead}, 800")
    a.op(f"v_lshlrev_b32 v{t0}, 4, v{vl}")
    a.op(f"buffer_load_dwordx4 v[{F.D1}:{F.D1+3}], v{t0}, s[{SPHI}:{SPHI+3}], s14 offen")
    a.op(f"v_add_u32 v{t0}, s{lds_base_s}, v{t0}")
    a.op("s_waitcnt vmcnt(0)")
    a.op(f"ds_write_b128 v{t0}, v[{F.D1}:{F.D1+3}]")
    a.op(f"v_and_b32 v{t1}, 31, v{vl}")
    a.op(f"v_lshrrev_b32 v{t2}, 3, v{t1}")
    a.op(f"v_and_b32 v{t3}, 3, v{t1}")
    a.op(f"v_lshl_add_u32 v{t4}, v{t2}, 2, v{t3}")
    a.op(f"v_add_u32 v{t3}, 16, v{t3}")
    a.op(f"v_lshrrev_b32 v{t5}, 5, v{vl}")
    a.op(f"v_mul_u32_u24 v{t5}, 320, v{t5}")
    a.op(f"v_lshl_add_u32 v{t4}, v{t4}, 1, v{t5}")
    a.op(f"v_lshl_add_u32 v{t3}, v{t3}, 1, v{t5}")
    a.op(f"v_add_u32 v{t4}, s{lds_base_s}, v{t4}")
    a.op(f"v_add_u32 v{t3}, s{lds_base_s}, v{t3}")
    a.op("s_waitcnt lgkmcnt(0)")
    for (tmpb, ad) in ((F.D1, t4), (F.D2, t3)):
        for j in range(8):
            a.op(f"ds_read_u16 v{tmpb + j}, v{ad} offset:{j*40}")
    a.op(f"v_subrev_u32 v{t4}, v{t5}, v{t4}")
    a.op(f"v_subrev_u32 v{t3}, v{t5}, v{t3}")
    a.op("s_waitcnt lgkmcnt(0)")
    for (tmpb, ad) in ((F.D1, t4), (F.D2, t3)):
        for j in range(4):
            a.op(f"ds_read_u16 v{tmpb + 8 + j}, v{ad} offset:{(16+j)*40}")
    a.op("s_waitcnt lgkmcnt(0)")
    for (tmpb, dm, dt) in ((F.D1, F.A1m, F.A1t), (F.D2, F.A2m, F.A2t)):
        for j in range(4):
            a.op(f"v_lshl_or_b32 v{dm + j}, v{tmpb + 2*j + 1}, 16, v{tmpb + 2*j}")
        for j in range(2):
            a.op(f"v_lshl_or_b32 v{dt + j}, v{tmpb + 8 + 2*j + 1}, 16, v{tmpb + 8 + 2*j}")
    a.op(f"v_bfe_u32 v{t0}, v{t1}, 2, 1")
    a.op(f"v_mov_b32 v{t5}, 0x80008000")
    a.op(f"v_mul_lo_u32 v{t0}, v{t0}, v{t5}")
    for r in list(range(F.A1m, F.A1m+4)) + list(range(F.A2m, F.A2m+4)) + [F.A1t, F.A1t+1, F.A2t, F.A2t+1]:
        a.op(f"v_xor_b32 v{r}, v{r}, v{t0}")
    a.op(f"v_cmp_eq_u32 vcc, 0, v{t2}")
    for r in list(range(F.A2m, F.A2m+4)) + [F.A2t, F.A2t+1]:
        a.op(f"v_cndmask_b32 v{r}, 0, v{r}, vcc")
    a.op(f"v_cmp_gt_u32 vcc, 32, v{vl}")
    for r in (F.A1t, F.A1t+1, F.A2t, F.A2t+1):
        a.op(f"v_cndmask_b32 v{r}, 0, v{r}, vcc")

def feature_map(a, F):
    a.op(f"v_mfma_f32_32x32x16_bf16 v[{F.D1}:{F.D1+15}], v[{F.A1m}:{F.A1m+3}], v[{F.Xm}:{F.Xm+3}], 0")
    a.op(f"v_mfma_f32_32x32x16_bf16 v[{F.D2}:{F.D2+15}], v[{F.A2m}:{F.A2m+3}], v[{F.Xm}:{F.Xm+3}], 0")
    a.op(f"v_mfma_f32_32x32x8bf16_1k v[{F.D1}:{F.D1+15}], v[{F.A1t}:{F.A1t+1}], v[{F.Xt}:{F.Xt+1}], v[{F.D1}:{F.D1+15}]")
    a.op(f"v_mfma_f32_32x32x8bf16_1k v[{F.D2}:{F.D2+15}], v[{F.A2t}:{F.A2t+1}], v[{F.Xt}:{F.Xt+1}], v[{F.D2}:{F.D2+15}]")
    a.op("s_nop 7"); a.op("s_nop 3")
    x = [F.D1 + i for i in range(16)] + [F.D2 + i for i in range(4)]
    m, z = F.t, F.t + 2
    a.op(f"v_max3_f32 v{m}, v{x[0]}, v{x[1]}, v{x[2]}")
    for i in range(3, 19, 2):
        a.op(f"v_max3_f32 v{m}, v{x[i]}, v{x[i+1]}, v{m}")
    a.op(f"v_max_f32 v{m}, v{x[19]}, v{m}")
    a.op(f"v_mul_f32 v{m}, {f32hex(-LOG2E)}, v{m}")
    a.op(f"s_mov_b32 s14, {f32hex(LOG2E)}")
    for i in range(20):
        a.op(f"v_fma_f32 v{x[i]}, v{x[i]}, s14, v{m}")
    for i in range(20):
        a.op(f"v_exp_f32 v{x[i]}, v{x[i]}")
    a.op("s_nop 0")
    a.op(f"v_pk_add_f32 v[{z}:{z+1}], v[{x[0]}:{x[1]}], v[{x[2]}:{x[3]}]")
    for i in range(4, 20, 2):
        a.op(f"v_pk_add_f32 v[{z}:{z+1}], v[{z}:{z+1}], v[{x[i]}:{x[i+1]}]")
    a.op(f"v_add_f32 v{z}, v{z}, v{z+1}")
    a.op(f"v_rcp_f32 v{z}, v{z}")
    a.op("s_nop 0")
    a.op(f"v_mov_b32 v{z+1}, v{z}")
    for i in range(0, 20, 2):
        a.op(f"v_pk_mul_f32 v[{x[i]}:{x[i+1]}], v[{x[i]}:{x[i+1]}], v[{z}:{z+1}]")
    for i in range(10):
        a.op(f"v_cvt_pk_bf16_f32 v{F.P+i}, v{x[2*i]}, v{x[2*i+1]}")
    a.op(f"v_mov_b32 v{F.P+10}, 0")
    a.op(f"v_mov_b32 v{F.P+11}, 0")

def load_x_frag(a, F, vl, sBlk, sTok, SWS, t0, t1):
    a.op(f"v_and_b32 v{t0}, 31, v{vl}")
    a.op(f"v_add_u32 v{t0}, s{sTok}, v{t0}")
    a.op(f"v_lshrrev_b32 v{t1}, 5, v{vl}")
    a.op(f"v_lshlrev_b32 v{t1}, 15, v{t1}")
    a.op(f"v_lshl_add_u32 v{t1}, v{t0}, 4, v{t1}")
    a.op(f"v_lshlrev_b32 v{t0}, 3, v{t0}")
    a.op(f"buffer_load_dwordx4 v[{F.Xm}:{F.Xm+3}], v{t1}, s[{SWS}:{SWS+3}], s{sBlk} offen")
    a.op(f"s_add_u32 s14, s{sBlk}, {OFF_T}")
    a.op(f"buffer_load_dwordx2 v[{F.Xt}:{F.Xt+1}], v{t0}, s[{SWS}:{SWS+3}], s14 offen")

def common_ids(a, vl, t0, sWave, sHead, sTb):
    a.op(f"v_and_b32 v{vl}, 63, v0")
    a.op(f"v_lshrrev_b32 v{t0}, 6, v0")
    a.op(f"s_and_b32 s14, s2, 7")
    a.op(f"s_lshl_b32 s14, s14, 2")
    a.op(f"v_readfirstlane_b32 s{sWave}, v{t0}")
    a.op(f"s_bfe_u32 s15, s2, 0x20003")
    a.op(f"s_add_u32 s{sHead}, s14, s15")
    a.op(f"s_lshr_b32 s{sTb}, s2, 5")

KB2_LDS = 65536
def gen_kb2(a, name="kb2_kernel", opts={}):
    kernel_header(a, name)
    ra = RegAlloc(1)
    vl = ra.get(1); tmp = [ra.get(1) for _ in range(6)]
    F = PhiRegs(ra)
    VA = [ra.get(4, 2), ra.get(4, 2)]
    BT = ra.get(4, 2)
    KVA = [ra.get(16, 2), ra.get(16, 2)]
    nv = ra.n
    sWave=20; sHead=21; sTb=22; sBlk=23; sTok=24; sScr=25; SWS=28; SPHI=32
    t0, t1, t2, t3, t4, t5 = tmp
    a.op("s_cmp_ge_u32 s2, 256")
    a.op(f"s_cbranch_scc1 {name}_end")
    a.op("s_load_dwordx2 s[12:13], s[0:1], 72")
    a.op("s_load_dwordx2 s[10:11], s[0:1], 40")
    common_ids(a, vl, t0, sWave, sHead, sTb)
    a.op(f"s_mul_i32 s{sBlk}, s{sHead}, {KVB}")
    a.op(f"s_add_u32 s{sBlk}, s{sBlk}, {BR_STRIDE + WS_KV}")
    a.op(f"s_lshl_b32 s{sTok}, s{sTb}, 8")
    a.op(f"s_lshl_b32 s14, s{sWave}, 5")
    a.op(f"s_add_u32 s{sTok}, s{sTok}, s14")
    a.op(f"s_lshl_b32 s{sScr}, s{sWave}, 12")
    a.op("s_waitcnt lgkmcnt(0)")
    srd(a, SWS, 12, WS_SIZE)
    srd(a, SPHI, 10, 32*800)
    load_x_frag(a, F, vl, sBlk, sTok, SWS, t0, t1)
    a.op(f"v_and_b32 v{t0}, 31, v{vl}")
    a.op(f"v_lshrrev_b32 v{t1}, 5, v{vl}")
    a.op(f"v_mul_u32_u24 v{t1}, 320, v{t1}")
    a.op(f"v_lshl_add_u32 v{t1}, v{t0}, 4, v{t1}")
    a.op(f"s_lshr_b32 s14, s{sTok}, 5")
    a.op(f"s_mul_i32 s14, s14, 1280")
    a.op(f"s_add_u32 s14, s14, s{sBlk}")
    a.op(f"s_add_u32 s14, s14, {OFF_V}")
    a.op(f"buffer_load_dwordx4 v[{VA[0]}:{VA[0]+3}], v{t1}, s[{SWS}:{SWS+3}], s14 offen")
    a.op(f"buffer_load_dwordx4 v[{VA[1]}:{VA[1]+3}], v{t1}, s[{SWS}:{SWS+3}], s14 offen offset:640")
    build_phi_operands(a, F, vl, sHead, SPHI, sScr, tmp)
    a.op(f"v_and_b32 v{t0}, 31, v{vl}")
    a.op(f"v_cmp_eq_u32 vcc, 20, v{t0}")
    a.op(f"v_mov_b32 v{t1}, 0x3f803f80")
    for s in range(2):
        for i in range(4): a.op(f"v_cndmask_b32 v{VA[s]+i}, v{VA[s]+i}, v{t1}, vcc")
    feature_map(a, F)
    a.op(f"v_and_b32 v{t0}, 31, v{vl}")
    a.op(f"v_mul_u32_u24 v{t0}, 80, v{t0}")
    a.op(f"v_lshrrev_b32 v{t1}, 5, v{vl}")
    a.op(f"v_mul_u32_u24 v{t1}, 40, v{t1}")
    a.op(f"v_add3_u32 v{t0}, v{t0}, v{t1}, s{sScr}")
    for i in range(5):
        a.op(f"ds_write_b64 v{t0}, v[{F.P+2*i}:{F.P+2*i+1}] offset:{8*i}")
    a.op(f"v_and_b32 v{t0}, 15, v{vl}")
    a.op(f"v_lshrrev_b32 v{t1}, 4, v{vl}")
    a.op(f"v_lshrrev_b32 v{t2}, 1, v{t1}")
    a.op(f"v_lshlrev_b32 v{t2}, 3, v{t2}")
    a.op(f"v_lshrrev_b32 v{t3}, 2, v{t0}")
    a.op(f"v_add_u32 v{t2}, v{t2}, v{t3}")
    a.op(f"v_mul_u32_u24 v{t2}, 80, v{t2}")
    a.op(f"v_and_b32 v{t1}, 1, v{t1}")
    a.op(f"v_lshlrev_b32 v{t1}, 5, v{t1}")
    a.op(f"v_and_b32 v{t0}, 3, v{t0}")
    a.op(f"v_lshl_add_u32 v{t1}, v{t0}, 3, v{t1}")
    a.op(f"v_add3_u32 v{t2}, v{t2}, v{t1}, s{sScr}")
    a.op("s_waitcnt lgkmcnt(0)")
    for ct in range(2):
        for s in range(2):
            a.op(f"ds_read_b64_tr_b16 v[{BT}:{BT+1}], v{t2} offset:{s*16*80 + ct*64}")
            a.op(f"ds_read_b64_tr_b16 v[{BT+2}:{BT+3}], v{t2} offset:{s*16*80 + 4*80 + ct*64}")
            a.op("s_waitcnt lgkmcnt(0)")
            c = "0" if s == 0 else f"v[{KVA[ct]}:{KVA[ct]+15}]"
            a.op(f"v_mfma_f32_32x32x16_bf16 v[{KVA[ct]}:{KVA[ct]+15}], v[{VA[s]}:{VA[s]+3}], v[{BT}:{BT+3}], {c}")
    a.op("s_nop 7"); a.op("s_nop 7")
    a.op("s_barrier")
    a.op(f"v_and_b32 v{t0}, 31, v{vl}")
    a.op(f"v_lshrrev_b32 v{t1}, 5, v{vl}")
    a.op(f"v_lshlrev_b32 v{t1}, 10, v{t1}")
    a.op(f"v_lshl_add_u32 v{t0}, v{t0}, 2, v{t1}")
    a.op(f"s_mul_i32 s14, s{sWave}, 6144")
    a.op(f"v_add_u32 v{t0}, s14, v{t0}")
    for ct in range(2):
        for r in range(12):
            d = 8*(r >> 2) + (r & 3)
            a.op(f"ds_write_b32 v{t0}, v{KVA[ct]+r} offset:{d*256 + ct*128}")
    a.op("s_waitcnt lgkmcnt(0)")
    a.op("s_barrier")
    for e in range(2):
        a.op(f"v_add_u32 v{t0}, {512*e}, v0")
        a.op(f"v_mul_u32_u24 v{t1}, 1639, v{t0}")
        a.op(f"v_lshrrev_b32 v{t1}, 16, v{t1}")
        a.op(f"v_mul_u32_u24 v{t2}, 40, v{t1}")
        a.op(f"v_sub_u32 v{t2}, v{t0}, v{t2}")
        a.op(f"v_lshlrev_b32 v{t1}, 8, v{t1}")
        a.op(f"v_lshl_add_u32 v{t1}, v{t2}, 2, v{t1}")
        for w in range(8):
            a.op(f"ds_read_b32 v{F.D1+w}, v{t1} offset:{w*6144}")
        a.op("s_waitcnt lgkmcnt(0)")
        for w in range(1, 8):
            a.op(f"v_add_f32 v{F.D1}, v{F.D1}, v{F.D1+w}")
        a.op(f"s_lshl_b32 s14, s{sHead}, 3")
        a.op(f"s_add_u32 s14, s14, s{sTb}")
        a.op(f"s_mul_i32 s14, s14, {PART_BYTES}")
        a.op(f"s_add_u32 s14, s14, {WS_KVP}")
        a.op(f"v_lshlrev_b32 v{t1}, 2, v{t0}")
        a.op(f"v_cmp_gt_u32 vcc, 840, v{t0}")
        a.op(f"v_mov_b32 v{t2}, 0x40000000")
        a.op(f"v_cndmask_b32 v{t1}, v{t2}, v{t1}, vcc")
        a.op(f"buffer_store_dword v{F.D1}, v{t1}, s[{SWS}:{SWS+3}], s14 offen")
    a.label(f"{name}_end")
    a.op("s_endpgm")
    return nv

KB3_LDS = 40960
def gen_kb3(a, name="kb3_kernel", opts={}):
    kernel_header(a, name)
    ra = RegAlloc(1)
    vl = ra.get(1); tmp = [ra.get(1) for _ in range(6)]
    F = PhiRegs(ra)
    KA = ra.get(12, 2)
    OD = ra.get(16, 2)
    adr = ra.get(3)
    nv = ra.n
    sWave=20; sHead=21; sTb=22; sBlk=23; sTok=24; sScr=25; SWS=28; SPHI=32
    t0, t1, t2, t3, t4, t5 = tmp
    a.op("s_cmp_ge_u32 s2, 256")
    a.op(f"s_cbranch_scc1 {name}_end")
    a.op("s_load_dwordx2 s[12:13], s[0:1], 72")
    a.op("s_load_dwordx2 s[10:11], s[0:1], 40")
    common_ids(a, vl, t0, sWave, sHead, sTb)
    a.op(f"s_mul_i32 s{sBlk}, s{sHead}, {QB}")
    a.op(f"s_add_u32 s{sBlk}, s{sBlk}, {BR_STRIDE + WS_Q}")
    a.op(f"s_lshl_b32 s{sTok}, s{sTb}, 8")
    a.op(f"s_lshl_b32 s14, s{sWave}, 5")
    a.op(f"s_add_u32 s{sTok}, s{sTok}, s14")
    a.op(f"s_lshl_b32 s{sScr}, s{sWave}, 12")
    a.op(f"s_add_u32 s{sScr}, s{sScr}, 4096")
    a.op("s_waitcnt lgkmcnt(0)")
    srd(a, SWS, 12, WS_SIZE)
    srd(a, SPHI, 10, 32*800)
    load_x_frag(a, F, vl, sBlk, sTok, SWS, t0, t1)
    a.op(f"v_lshlrev_b32 v{t0}, 4, v0")
    for i in range(4): a.op(f"v_mov_b32 v{OD+i}, 0")
    a.op(f"v_cmp_gt_u32 vcc, 192, v0")
    a.op("s_and_saveexec_b64 s[16:17], vcc")
    a.op(f"s_cbranch_execz {name}_z")
    a.op(f"ds_write_b128 v{t0}, v[{OD}:{OD+3}]")
    a.label(f"{name}_z")
    a.op("s_mov_b64 exec, s[16:17]")
    a.op(f"s_lshl_b32 s14, s{sHead}, 3")
    a.op(f"s_mul_i32 s14, s14, {PART_BYTES}")
    a.op(f"s_add_u32 s14, s14, {WS_KVP}")
    for e in range(2):
        a.op(f"v_add_u32 v{t0}, {512*e}, v0")
        a.op(f"v_lshlrev_b32 v{t1}, 2, v{t0}")
        a.op(f"v_cmp_gt_u32 vcc, 840, v{t0}")
        a.op(f"v_mov_b32 v{t2}, 0x40000000")
        a.op(f"v_cndmask_b32 v{t1}, v{t2}, v{t1}, vcc")
        for p in range(8):
            a.op(f"s_add_u32 s15, s14, {p*PART_BYTES}")
            a.op(f"buffer_load_dword v{F.D1+8*e+p}, v{t1}, s[{SWS}:{SWS+3}], s15 offen")
    a.op("s_waitcnt vmcnt(0) lgkmcnt(0)")
    a.op("s_barrier")
    for e in range(2):
        for p in range(1, 8):
            a.op(f"v_add_f32 v{F.D1+8*e}, v{F.D1+8*e}, v{F.D1+8*e+p}")
        a.op(f"v_cvt_pk_bf16_f32 v{F.D1+8*e}, v{F.D1+8*e}, v{F.D1+8*e}")
        a.op(f"v_add_u32 v{t0}, {512*e}, v0")
        a.op(f"v_mul_u32_u24 v{t1}, 1639, v{t0}")
        a.op(f"v_lshrrev_b32 v{t1}, 16, v{t1}")
        a.op(f"v_mul_u32_u24 v{t2}, 40, v{t1}")
        a.op(f"v_sub_u32 v{t2}, v{t0}, v{t2}")
        a.op(f"v_mul_u32_u24 v{t1}, 96, v{t1}")
        a.op(f"v_lshl_add_u32 v{t1}, v{t2}, 1, v{t1}")
        a.op(f"v_cmp_lt_u32 vcc, 19, v{t2}")
        a.op(f"v_mov_b32 v{t3}, 8")
        a.op(f"v_cndmask_b32 v{t3}, 0, v{t3}, vcc")
        a.op(f"v_add_u32 v{t1}, v{t1}, v{t3}")
        a.op(f"v_cmp_gt_u32 vcc, 840, v{t0}")
        a.op("s_and_saveexec_b64 s[16:17], vcc")
        a.op(f"s_cbranch_execz {name}_w{e}")
        a.op(f"ds_write_b16 v{t1}, v{F.D1+8*e}")
        a.label(f"{name}_w{e}")
        a.op("s_mov_b64 exec, s[16:17]")
    build_phi_operands(a, F, vl, sHead, SPHI, sScr, tmp)
    feature_map(a, F)
    a.op("s_waitcnt lgkmcnt(0)")
    a.op("s_barrier")
    a.op(f"v_and_b32 v{t0}, 31, v{vl}")
    a.op(f"v_mul_u32_u24 v{t0}, 96, v{t0}")
    a.op(f"v_lshrrev_b32 v{t1}, 5, v{vl}")
    a.op(f"v_mul_u32_u24 v{t1}, 48, v{t1}")
    a.op(f"v_add_u32 v{t0}, v{t0}, v{t1}")
    for j in range(3):
        a.op(f"ds_read_b128 v[{KA+4*j}:{KA+4*j+3}], v{t0} offset:{16*j}")
    a.op("s_waitcnt lgkmcnt(0)")
    for j in range(3):
        c = "0" if j == 0 else f"v[{OD}:{OD+15}]"
        a.op(f"v_mfma_f32_32x32x16_bf16 v[{OD}:{OD+15}], v[{KA+4*j}:{KA+4*j+3}], v[{F.P+4*j}:{F.P+4*j+3}], {c}")
    a.op(f"v_and_b32 v{t2}, 31, v{vl}")
    a.op(f"v_add_u32 v{t2}, s{sTok}, v{t2}")
    a.op(f"v_lshlrev_b32 v{t2}, 4, v{t2}")
    a.op(f"v_lshrrev_b32 v{t3}, 5, v{vl}")
    a.op(f"s_mul_i32 s14, s{sHead}, 5")
    a.op(f"v_add_u32 v{t3}, s14, v{t3}")
    for aa in range(3):
        a.op(f"v_add_u32 v{t0}, {2*aa}, v{t3}")
        a.op(f"v_lshrrev_b32 v{t1}, 1, v{t0}")
        a.op(f"v_lshlrev_b32 v{t1}, 15, v{t1}")
        a.op(f"v_and_b32 v{t0}, 1, v{t0}")
        a.op(f"v_lshl_add_u32 v{t1}, v{t0}, 3, v{t1}")
        a.op(f"v_add_u32 v{adr+aa}, v{t1}, v{t2}")
    a.op(f"v_cmp_gt_u32 vcc, 32, v{vl}")
    a.op(f"v_mov_b32 v{t0}, 0x40000000")
    a.op(f"v_cndmask_b32 v{adr+2}, v{t0}, v{adr+2}, vcc")
    a.op("s_nop 7")
    a.op(f"v_mov_b32 v{t0}, v{OD+8}")
    a.op(f"v_mov_b32 v{t1}, v{OD+8}")
    a.op("s_nop 1")
    a.op(f"v_permlane32_swap_b32 v{t0}, v{t1}")
    a.op("s_nop 1")
    a.op(f"v_add_f32 v{t1}, {f32hex(1e-6)}, v{t1}")
    a.op(f"v_rcp_f32 v{t1}, v{t1}")
    a.op("s_nop 0")
    for i in range(12):
        a.op(f"v_mul_f32 v{OD+i}, v{OD+i}, v{t1}")
    for j in range(6):
        a.op(f"v_cvt_pk_bf16_f32 v{KA+j}, v{OD+2*j}, v{OD+2*j+1}")
    a.op(f"s_mov_b32 s14, {WS_OI + OI_STRIDE}")
    for aa in range(3):
        a.op(f"buffer_store_dwordx2 v[{KA+2*aa}:{KA+2*aa+1}], v{adr+aa}, s[{SWS}:{SWS+3}], s14 offen")
    a.label(f"{name}_end")
    a.op("s_endpgm")
    return nv
```

```python
from asmlib import *
class Item:
    def __init__(self, txt, earliest=0, lds_id=None, deadline=None, cost=1):
        self.txt = txt; self.earliest = earliest; self.lds_id = lds_id; self.deadline = deadline; self.cost = cost

def schedule(nm, queues, cap=2, fixed=None):
    fixed = fixed or {}
    out = {g: [] for g in range(nm + 1)}
    pos = [0]*len(queues)
    for g in range(nm + 1):
        room = cap - fixed.get(g, 0)
        if g == nm: room = 10**6
        progress = True
        while room > 0 and progress:
            progress = False
            for qi, q in enumerate(queues):
                if room <= 0: break
                if pos[qi] < len(q) and q[pos[qi]].earliest <= g:
                    it = q[pos[qi]]
                    out[g].append(it); pos[qi] += 1; room -= it.cost
                    progress = True
                    break
    for qi, q in enumerate(queues):
        assert pos[qi] == len(q), ("unplaced", qi, pos[qi], len(q))
    for g, its in out.items():
        for it in its:
            if it.deadline is not None:
                assert g <= it.deadline, ("deadline missed", it.txt, g, it.deadline)
    return out

def emit_scheduled(a, mfmas, placed, needs, lg, ids):
    for g in range(len(mfmas) + 1):
        for it in placed[g]:
            a.op(it.txt)
            if it.lds_id is not None:
                ids[it.lds_id] = lg.issue()
        if g < len(mfmas):
            for key in needs.get(g, []):
                lg.need(ids[key])
            if mfmas[g]: a.op(mfmas[g])
```

```python
import sys, functools
sys.path.insert(0, "gen")
from build import build
import k1, k2, kb, k3
def full(stamps=False, opts={}):
    P = functools.partial
    return build([("k1_kernel", P(k1.gen_k1, stamps=stamps, opts=opts.get('k1', {})), 256, 256, k1.K1_LDS),
                  ("kb2_kernel", kb.gen_kb2, 256, 512, kb.KB2_LDS),
                  ("k2_kernel", P(k2.gen_k2, stamps=stamps, opts=opts.get('k2', {})), 256, 512, k2.K2_LDS),
                  ("kb3_kernel", kb.gen_kb3, 256, 512, kb.KB3_LDS),
                  ("k3_kernel", P(k3.gen_k3, stamps=stamps, opts=opts.get('k3', {})), 256, 256, k3.K3_LDS)])
if __name__ == "__main__":
    out = sys.argv[1] if len(sys.argv) > 1 else "concat_heads__softmax_full_mha__linear_kernel_hedgehog__prompt.s"
    open(out, "w").write(full())
    print("wrote", out)
```

```python
import sys, functools
sys.path.insert(0, "gen")
from build import build
from common import *
import k1, k2, kb, k3
def gen_empty(a, name):
    kernel_header(a, name)
    a.op("s_endpgm")
    return 8
K1 = ("k1_kernel", k1.gen_k1, 256, 256, k1.K1_LDS)
KB2 = ("kb2_kernel", kb.gen_kb2, 256, 512, kb.KB2_LDS)
K2 = ("k2_kernel", k2.gen_k2, 256, 512, k2.K2_LDS)
KB3 = ("kb3_kernel", kb.gen_kb3, 256, 512, kb.KB3_LDS)
K3 = ("k3_kernel", k3.gen_k3, 256, 256, k3.K3_LDS)
E = ("empty_kernel", gen_empty, 256, 256, 0)
V = {
 "v0": [K1, KB2, K2, KB3, K3],
 "v1": [K1, KB2, K2, KB3, K3, E, E, E, E, E],
 "v2": [E, E, E, E, E, K1, KB2, K2, KB3, K3],
 "v3": [K1, KB2, K2, KB3, K3, K3],
 "v4": [K1, KB2, K2, K2, KB3, K3],
 "v5": [K1, K1, KB2, K2, KB3, K3],
}
import os
os.makedirs("var", exist_ok=True)
for n, l in V.items():
    open(f"var/{n}.s", "w").write(build(l))
```

```python
from asmlib import *

class AttnRegs:
    def __init__(self, base=0):
        b = base
        self.S = [b, b+16, b+32, b+48]; b += 64
        self.O = [b, b+16]; b += 32
        self.Qm = [b, b+4]; b += 8
        self.Qlo = [b, b+2]; b += 4
        self.Qhi = [b, b+2]; b += 4
        self.Km = [b, b+4]; b += 8
        self.V0 = [b, b+4]; b += 8
        self.V1 = [b, b+4]; b += 8
        self.Kt = [b, b+2]; b += 4
        self.idx = b; b += 1
        self.aKm = b; b += 1
        self.aKt = b; b += 1
        self.aV = b; b += 1
        self.end = b

SKIP = set()
def qk_main(a, R, n, tile, c="0"):
    if 'qkm' in SKIP: return
    a.op(f"v_mfma_f32_32x32x16_bf16 {vr(R.S[n%4],16)}, {vr(R.Km[tile%2],4)}, {vr(R.Qm[n%2],4)}, {c}")
def qk_tail(a, R, n, tile):
    if 'qkt' in SKIP: return
    kt = R.Kt[(tile // 2) % 2]
    q = (R.Qhi if (tile & 1) else R.Qlo)[n%2]
    a.op(f"v_mfma_f32_32x32x8bf16_1k {vr(R.S[n%4],16)}, {vr(kt,2)}, {vr(q,2)}, {vr(R.S[n%4],16)}")
def pv(a, R, n, s):
    if 'pv' in SKIP: return
    tile = n >> 1
    v = (R.V1 if s else R.V0)[tile % 2]
    a.op(f"v_smfmac_f32_32x32x32_bf16 {vr(R.O[n%2],16)}, {vr(v,4)}, {vr(R.S[n%4]+8*s,8)}, {vr(R.idx)}")
def exps(a, R, n, lo, hi):
    if 'exp' in SKIP: return
    for i in range(lo, hi):
        a.op(f"v_exp_f32 {vr(R.S[n%4]+i)}, {vr(R.S[n%4]+i)}")
def rd_km(a, R, tk, t0):
    a.op(f"ds_read_b128 {vr(R.Km[tk%2],4)}, {vr(R.aKm)} offset:{(tk-t0)*512}")
def rd_kt(a, R, pr, t0):
    a.op(f"ds_read_b64 {vr(R.Kt[pr%2],2)}, {vr(R.aKt)} offset:{(pr-t0//2)*512}")
def rd_v(a, R, tv, s, t0):
    a.op(f"ds_read_b128 {vr((R.V1 if s else R.V0)[tv%2],4)}, {vr(R.aV)} offset:{(tv-t0)*1280 + s*640}")

def slots(a, R, lg, ids, n0, n1, opts, hooks={}):
    sx = opts.get('sexec', 40)
    t0 = opts['t0']
    for n in range(n0, n1):
        t = n >> 1
        if (n - n0) in hooks: hooks[n - n0]()
        if n % 2 == 1:
            tk = (n + 3) // 2
            rd_km(a, R, tk, t0); ids[('Km', tk)] = lg.issue()
        if n % 4 == 1:
            pr = n // 4 + 1
            rd_kt(a, R, pr, t0); ids[('Kt', pr)] = lg.issue()
        tn = (n + 1) >> 1
        lg.need(ids[('Km', tn)])
        qk_main(a, R, n + 1, tn)
        exps(a, R, n, 0, 4)
        lg.need(ids[('Kt', tn // 2)])
        qk_tail(a, R, n + 1, tn)
        exps(a, R, n, 4, 8)
        lg.need(ids[('V1', (n - 1) >> 1)])
        pv(a, R, n - 1, 1)
        if n % 2 == 0:
            tv = t + 1
            if opts.get('vexec', True): a.op(f"s_mov_b64 exec, s[{sx}:{sx+1}]")
            rd_v(a, R, tv, 0, t0); ids[('V0', tv)] = lg.issue()
            rd_v(a, R, tv, 1, t0); ids[('V1', tv)] = lg.issue()
            if opts.get('vexec', True): a.op(f"s_mov_b64 exec, -1")
        exps(a, R, n, 8, 12)
        lg.need(ids[('V0', t)])
        pv(a, R, n, 0)
        exps(a, R, n, 12, 16)

def loop_body(a, R, opts, nslots=16, hooks={}):
    dummy = Asm()
    lg = LgkmTracker(dummy)
    ids = {}
    nt = nslots // 2
    for key in [('Km', -nt), ('Km', -nt+1), ('Kt', -nt//2), ('V0', -nt), ('V1', -nt), ('V1', -nt-1)]:
        ids[key] = 0
    o = dict(opts); o['t0'] = -nt
    slots(dummy, R, lg, ids, -nslots, 0, o)
    lg.asm = a
    o['t0'] = 0
    slots(a, R, lg, ids, 0, nslots, o, hooks)
```

```python
from asmlib import *
BR_STRIDE = 0x800000
WS_Q = 0x000000
WS_KV = 0x280000
QB = 81920
KVB = 163840
OFF_T = 65536
OFF_V = 81920
WS_OI = 0x1000000
OI_STRIDE = 0x280000
WS_PHI = 0x1580000
WS_KVP = 0x1600000
WS_SIZE = 0x10000000

KARG = dict(A_x=0, A_wqkv=8, A_wo=16, B_x=24, B_wqkv=32, B_wphi=40, B_wo=48, out=56, dbg=64, ws=72)

def srd(a, s, base, nbytes):
    a.op(f"s_mov_b32 s{s}, s{base}")
    a.op(f"s_mov_b32 s{s+1}, s{base+1}")
    a.op(f"s_mov_b32 s{s+2}, {nbytes:#x}")
    a.op(f"s_mov_b32 s{s+3}, 0x00020000")

def kernel_header(a, name):
    a(f".globl {name}")
    a(".p2align 8")
    a(f".type {name},@function")
    a(f"{name}:")

def kernel_desc(name, nvgpr, nsgpr=102, accum=None):
    accum = accum if accum is not None else ((nvgpr + 3)//4)*4
    return f""".p2align 6
.amdhsa_kernel {name}
  .amdhsa_next_free_vgpr {nvgpr}
  .amdhsa_next_free_sgpr {nsgpr}
  .amdhsa_accum_offset {accum}
  .amdhsa_group_segment_fixed_size 0
  .amdhsa_kernarg_size 80
  .amdhsa_user_sgpr_count 2
  .amdhsa_user_sgpr_kernarg_segment_ptr 1
  .amdhsa_system_sgpr_workgroup_id_x 1
  .amdhsa_float_denorm_mode_32 3
  .amdhsa_float_denorm_mode_16_64 3
.end_amdhsa_kernel
"""

class RegAlloc:
    def __init__(self, start=0):
        self.n = start
    def get(self, cnt=1, align=1):
        self.n = (self.n + align - 1)//align*align
        r = self.n
        self.n += cnt
        return r

WS_STAMP = 0x8000000
class Stamps:
    def __init__(self, a, enabled, base=64, slot=0):
        self.a = a; self.on = enabled; self.base = base; self.n = 0; self.slot = slot
        if enabled: a.op(f"s_memrealtime s[{base+12}:{base+13}]")
    def stamp(self):
        if not self.on: return
        assert self.n < 6
        self.a.op(f"s_memtime s[{self.base+2*self.n}:{self.base+2*self.n+1}]")
        self.n += 1
    def real(self, which):
        if not self.on: return
        self.a.op(f"s_memrealtime s[{self.base+12+2*which}:{self.base+13+2*which}]")
        if which == 1: self.end_done = True
    def dump(self, srd_ws, swave, vtmp, nwaves_log2=4):
        if not self.on: return
        a = self.a
        if not getattr(self, 'end_done', False): a.op(f"s_memrealtime s[{self.base+14}:{self.base+15}]")
        a.op("s_waitcnt lgkmcnt(0)")
        a.op(f"s_lshl_b32 s{self.base+30}, s2, {nwaves_log2}")
        a.op(f"s_add_u32 s{self.base+30}, s{self.base+30}, s{swave}")
        a.op(f"s_lshl_b32 s{self.base+30}, s{self.base+30}, 5")
        a.op(f"s_add_u32 s{self.base+30}, s{self.base+30}, {WS_STAMP + self.slot*0x40000}")
        a.op(f"v_mov_b32 v{vtmp}, 0")
        for i in list(range(self.n)) + [6, 7]:
            a.op(f"v_mov_b32 v{vtmp+1}, s{self.base+2*i}")
            a.op(f"buffer_store_dword v{vtmp+1}, v{vtmp}, s[{srd_ws}:{srd_ws+3}], s{self.base+30} offen offset:{4*i}")
```

```python
from common import *
from sched import *
import kb
QSCALE = 20**-0.5 * 1.4426950408889634
import struct
def f32hex(x): return "0x%08x" % struct.unpack("<I", struct.pack("<f", x))[0]

XSLOT = 16384
WG_STRIDE = 1088
WSLOT = 32*WG_STRIDE
LDS_X = 0
LDS_W = 3*XSLOT
K1_SCR = 3*XSLOT + 3*WSLOT
K1_LDS = K1_SCR + 1024
K1_BLOCK = 320
NST = 10

def gen_k1(a, name="k1_kernel", stamps=False, opts={}):
    kernel_header(a, name)
    st_ = Stamps(a, stamps)
    st_.stamp()
    ra = RegAlloc(0)
    vtid = ra.get(1); vl = ra.get(1)
    t0 = ra.get(1); t1 = ra.get(1); t2 = ra.get(1); t3 = ra.get(1); t4 = ra.get(1); t5 = ra.get(1)
    vxd = ra.get(4)
    vwd = ra.get(4)
    aX = [[ra.get(1), ra.get(1)], [ra.get(1), ra.get(1)]]
    aWf = ra.get(1); aWh = ra.get(1)
    eA = ra.get(3); eS = ra.get(3); eT = ra.get(4); eV = ra.get(6)
    XF = [ra.get(16, 4), ra.get(16, 4)]
    NB = 6
    WF = [ra.get(4, 4) for _ in range(NB)]
    ACC = ra.get(120, 4)
    nv = ra.n
    def accF(seg, t, i): return ACC + ((seg*2 + t)*4 + i)*4
    def accH(seg, i): return ACC + 96 + (seg*2 + i)*4
    sWave=20; sBr=21; sMt=22; sJ=23; sWm=24; sWn=25
    SX=28; SW=32; SWS=36
    sXo=40; sWo=41; sCnt=42; sRd=43; sWo2=44; sT=45; sT2=46; sXm0=48; sWm0=49; sNrX=50; sNrW=51
    sXp=52; sXn=53; sWp=54; sWn2=55; sSc=56
    a.op("s_cmp_ge_u32 s2, 256")
    a.op(f"s_cbranch_scc1 {name}_end")
    a.op("s_load_dwordx4 s[4:7], s[0:1], 0")
    a.op("s_load_dwordx4 s[8:11], s[0:1], 24")
    a.op("s_load_dwordx2 s[12:13], s[0:1], 72")
    a.op(f"v_and_b32 v{vl}, 63, v0")
    a.op(f"v_lshrrev_b32 v{t0}, 6, v0")
    a.op(f"s_and_b32 s14, s2, 7")
    a.op(f"s_lshr_b32 s15, s2, 3")
    a.op(f"v_readfirstlane_b32 s{sWave}, v{t0}")
    a.op(f"s_lshr_b32 s{sBr}, s14, 2")
    a.op(f"s_bfe_u32 s16, s14, 0x10001")
    a.op(f"s_lshl_b32 s16, s16, 3")
    a.op(f"s_and_b32 s17, s15, 7")
    a.op(f"s_add_u32 s{sMt}, s16, s17")
    a.op(f"s_and_b32 s16, s14, 1")
    a.op(f"s_lshl_b32 s16, s16, 2")
    a.op(f"s_lshr_b32 s17, s15, 3")
    a.op(f"s_add_u32 s{sJ}, s16, s17")
    a.op(f"s_cmp_eq_u32 s{sWave}, 4")
    a.op(f"s_cbranch_scc1 {name}_helper")
    a.op(f"s_and_b32 s{sWm}, s{sWave}, 1")
    a.op(f"s_lshr_b32 s{sWn}, s{sWave}, 1")
    a.op(f"v_lshrrev_b32 v{t0}, 3, v{vl}")
    a.op(f"v_and_b32 v{t1}, 7, v{vl}")
    a.op(f"v_xor_b32 v{t1}, v{t1}, v{t0}")
    a.op(f"s_lshl_b32 s16, s{sMt}, 7")
    a.op(f"s_lshl_b32 s17, s{sWave}, 5")
    a.op(f"s_add_u32 s16, s16, s17")
    a.op(f"v_add_u32 v{t0}, s16, v{t0}")
    a.op(f"v_mul_u32_u24 v{vxd}, 1280, v{t0}")
    a.op(f"v_lshl_add_u32 v{vxd}, v{t1}, 4, v{vxd}")
    for j in range(1, 4):
        a.op(f"v_add_u32 v{vxd+j}, {9216*j}, v{vxd}")
    a.op(f"v_cmp_lt_u32 vcc, 29, v{vl}")
    a.op(f"s_lshl_b32 s16, s{sWave}, 4")
    a.op(f"s_mul_i32 s16, s16, 3840")
    a.op(f"s_mul_i32 s17, s{sJ}, 480")
    a.op(f"s_add_u32 s16, s16, s17")
    a.op(f"v_lshlrev_b32 v{t0}, 4, v{vl}")
    a.op(f"v_mov_b32 v{t1}, {3840-480}")
    a.op(f"v_cndmask_b32 v{t1}, 0, v{t1}, vcc")
    a.op(f"v_add3_u32 v{t0}, v{t0}, v{t1}, s16")
    a.op(f"v_cmp_gt_u32 vcc, 60, v{vl}")
    a.op(f"v_mov_b32 v{t1}, 0x40000000")
    a.op(f"v_cndmask_b32 v{vwd}, v{t1}, v{t0}, vcc")
    rowc = [0, 2, 8, 10]
    for j in range(1, 4):
        a.op(f"v_add_u32 v{vwd+j}, {rowc[j]*3840 - WG_STRIDE*j}, v{vwd}")
    a.op(f"s_lshl_b32 s{sXm0}, s{sWave}, 12")
    a.op(f"s_mul_i32 s{sWm0}, s{sWave}, {8*WG_STRIDE}")
    a.op(f"s_add_u32 s{sWm0}, s{sWm0}, {LDS_W}")
    a.op("s_waitcnt lgkmcnt(0)")
    a.op(f"s_cmp_eq_u32 s{sBr}, 0")
    a.op("s_cselect_b32 s4, s4, s8")
    a.op("s_cselect_b32 s5, s5, s9")
    a.op("s_cselect_b32 s6, s6, s10")
    a.op("s_cselect_b32 s7, s7, s11")
    srd(a, SX, 4, 2048*1280)
    srd(a, SW, 6, 640*3840)
    def dma_x(j): return f"buffer_load_dwordx4 v{vxd+j}, s[{SX}:{SX+3}], s{sXo} offen offset:{1024*j} {opts.get('ldflags','')} lds"
    def dma_w(j, hi): return f"buffer_load_dwordx4 v{vwd+j}, s[{SW}:{SW+3}], s{sWo2 if hi else sWo} offen offset:{WG_STRIDE*j} {opts.get('ldflags','')} lds"
    for st in range(2):
        a.op(f"s_mov_b32 s{sXo}, {st*128}")
        a.op(f"s_add_u32 m0, s{sXm0}, {st*XSLOT}")
        a.op(f"s_mov_b32 s{sWo}, {st*245760}")
        for j in range(4): a.op(dma_x(j))
        a.op(f"s_add_u32 m0, s{sWm0}, {st*WSLOT}")
        a.op(f"s_mov_b32 s{sWo2}, {st*245760 + 4*3840}")
        for j in range(4): a.op(dma_w(j, 0))
        a.op(f"s_add_u32 m0, m0, {4*WG_STRIDE}")
        a.op("s_nop 0")
        for j in range(4): a.op(dma_w(j, 1))
    srd(a, SWS, 12, WS_SIZE)
    a.op(f"v_and_b32 v{t0}, 15, v{vl}")
    a.op(f"v_lshrrev_b32 v{t1}, 4, v{vl}")
    a.op(f"v_and_b32 v{t2}, 7, v{t0}")
    a.op(f"v_xor_b32 v{t2}, v{t2}, v{t1}")
    a.op(f"v_lshlrev_b32 v{t2}, 4, v{t2}")
    a.op(f"v_lshl_add_u32 v{t2}, v{t0}, 7, v{t2}")
    a.op(f"s_lshl_b32 s16, s{sWm}, 13")
    a.op(f"s_lshl_b32 s17, s{sWn}, 12")
    a.op(f"s_add_u32 s18, s16, s17")
    a.op(f"v_add_u32 v{aX[0][0]}, s18, v{t2}")
    a.op(f"s_xor_b32 s17, s17, 4096")
    a.op(f"s_add_u32 s18, s16, s17")
    a.op(f"v_add_u32 v{aX[1][0]}, s18, v{t2}")
    a.op(f"v_xor_b32 v{aX[0][1]}, 64, v{aX[0][0]}")
    a.op(f"v_xor_b32 v{aX[1][1]}, 64, v{aX[1][0]}")
    a.op(f"v_lshrrev_b32 v{t2}, 1, v{t1}")
    a.op(f"v_lshlrev_b32 v{t2}, 3, v{t2}")
    a.op(f"v_and_b32 v{t3}, 1, v{t1}")
    a.op(f"v_lshl_add_u32 v{t2}, v{t3}, 1, v{t2}")
    a.op(f"v_lshrrev_b32 v{t3}, 3, v{t0}")
    a.op(f"v_add_u32 v{t2}, v{t2}, v{t3}")
    a.op(f"v_mul_u32_u24 v{t2}, {WG_STRIDE}, v{t2}")
    a.op(f"v_bfe_u32 v{t3}, v{t0}, 2, 1")
    a.op(f"v_mul_u32_u24 v{t3}, 480, v{t3}")
    a.op(f"v_add_u32 v{t2}, v{t2}, v{t3}")
    a.op(f"v_and_b32 v{t3}, 3, v{t0}")
    a.op(f"v_lshl_add_u32 v{t2}, v{t3}, 3, v{t2}")
    a.op(f"v_add_u32 v{aWh}, {LDS_W}, v{t2}")
    a.op(f"s_mul_i32 s16, s{sWn}, 96")
    a.op(f"v_add_u32 v{aWf}, s16, v{aWh}")
    r = t0; g = t1
    a.op(f"s_lshl_b32 s16, s{sWm}, 6")
    a.op(f"s_lshl_b32 s17, s{sWn}, 5")
    for i in range(4):
        a.op(f"s_xor_b32 s18, s17, {16*i}")
        a.op(f"s_add_u32 s18, s18, s16")
        a.op(f"v_add_u32 v{eT+i}, s18, v{r}")
    tmp = [t2, t3, t4, t5, XF[0], XF[0]+1]
    for v in range(3):
        if v < 2:
            a.op(f"s_mul_i32 s18, s{sWn}, 12")
            a.op(f"s_add_u32 s18, s18, {4*v}")
        else:
            a.op(f"s_mov_b32 s18, 8")
        a.op(f"v_add_u32 v{tmp[0]}, s18, v{g}")
        a.op(f"v_mul_u32_u24 v{tmp[1]}, 13, v{tmp[0]}")
        a.op(f"v_lshrrev_b32 v{tmp[1]}, 6, v{tmp[1]}")
        a.op(f"v_mul_u32_u24 v{tmp[2]}, 5, v{tmp[1]}")
        a.op(f"v_sub_u32 v{tmp[2]}, v{tmp[0]}, v{tmp[2]}")
        a.op(f"v_mul_u32_u24 v{tmp[1]}, 5120, v{tmp[1]}")
        a.op(f"v_lshrrev_b32 v{tmp[3]}, 1, v{tmp[2]}")
        a.op(f"v_lshlrev_b32 v{tmp[3]}, 11, v{tmp[3]}")
        a.op(f"v_and_b32 v{tmp[4]}, 1, v{tmp[2]}")
        a.op(f"v_lshl_add_u32 v{tmp[3]}, v{tmp[4]}, 3, v{tmp[3]}")
        a.op(f"v_add_u32 v{eA+v}, v{tmp[1]}, v{tmp[3]}")
        a.op(f"v_cmp_eq_u32 vcc, 4, v{tmp[2]}")
        a.op(f"v_mov_b32 v{tmp[5]}, 16")
        a.op(f"s_lshl_b32 s19, s18, 2")
        a.op(f"v_cndmask_b32 v{eS+v}, v{tmp[5]}, 8, vcc")
        a.op(f"v_add_u32 v{tmp[0]}, s19, v{r}")
        a.op(f"v_mul_u32_u24 v{tmp[1]}, 205, v{tmp[0]}")
        a.op(f"v_lshrrev_b32 v{tmp[1]}, 12, v{tmp[1]}")
        a.op(f"v_mul_u32_u24 v{tmp[2]}, 20, v{tmp[1]}")
        a.op(f"v_sub_u32 v{tmp[2]}, v{tmp[0]}, v{tmp[2]}")
        a.op(f"v_mul_u32_u24 v{tmp[1]}, 5120, v{tmp[1]}")
        a.op(f"v_lshl_add_u32 v{tmp[1]}, v{tmp[2]}, 4, v{tmp[1]}")
        a.op(f"v_lshrrev_b32 v{tmp[3]}, 1, v{g}")
        a.op(f"v_mul_u32_u24 v{tmp[3]}, 320, v{tmp[3]}")
        a.op(f"v_and_b32 v{tmp[4]}, 1, v{g}")
        a.op(f"v_lshl_add_u32 v{tmp[3]}, v{tmp[4]}, 3, v{tmp[3]}")
        a.op(f"s_mul_i32 s19, s{sWm}, 2560")
        a.op(f"v_add3_u32 v{tmp[1]}, v{tmp[1]}, v{tmp[3]}, s19")
        a.op(f"s_mul_i32 s19, s{sWn}, 1280")
        a.op(f"v_add_u32 v{eV+2*v}, s19, v{tmp[1]}")
        a.op(f"s_sub_u32 s19, 1280, s19")
        a.op(f"v_add_u32 v{eV+2*v+1}, s19, v{tmp[1]}")
    for s in range(3):
        a.op(f"s_mul_i32 s18, s{sJ}, 3")
        a.op(f"s_add_u32 s18, s18, {s}")
        a.op(f"s_lshr_b32 s18, s18, 3")
        a.op(f"s_add_u32 s18, s18, s{sBr}")
        a.op(f"s_cmp_eq_u32 s18, 0")
        a.op(f"s_cselect_b32 s{sSc+2*s}, {f32hex(QSCALE)}, 1.0")
        a.op(f"s_mov_b32 s{sSc+2*s+1}, s{sSc+2*s}")
    for rr in range(XF[0], ACC + 120):
        a.op(f"v_mov_b32 v{rr}, 0")
    a.op(f"s_mov_b32 s{sCnt}, 0")
    a.op(f"s_mov_b32 s{sRd}, 0")
    a.op(f"s_mov_b32 s{sNrX}, {2048*1280}")
    a.op(f"s_mov_b32 s{sNrW}, {640*3840}")
    a.op(f"s_mov_b32 s{sXp}, {XSLOT}")
    a.op(f"s_mov_b32 s{sXn}, {-2*XSLOT & 0xffffffff}")
    a.op(f"s_mov_b32 s{sWp}, {WSLOT}")
    a.op(f"s_mov_b32 s{sWn2}, {-2*WSLOT & 0xffffffff}")
    a.op(f"s_add_u32 s{sXm0}, s{sXm0}, {2*XSLOT}")
    a.op(f"s_add_u32 s{sWm0}, s{sWm0}, {2*WSLOT}")
    a.op(f"s_mov_b32 s{sXo}, {2*128}")
    a.op(f"s_mov_b32 s{sWo}, {2*245760}")
    a.op(f"s_mov_b32 s{sWo2}, {2*245760 + 4*3840}")
    a.op("s_waitcnt vmcnt(12)")
    a.op("s_barrier")
    st_.stamp()

    groups = []
    for ks in range(2):
        for seg in range(3):
            groups += [(ks, seg, 'F', 0), (ks, seg, 'F', 1), (ks, seg, 'H', 0)]
    NG = 18
    NPREV = 4
    order = list(range(NG - NPREV, NG)) + list(range(0, NG - NPREV))
    def gsize(gi): return 4 if groups[gi][2] == 'F' else 2
    start = {}; p = 0
    for k_, gi in enumerate(order):
        start[(gi, k_ < NPREV)] = p; p += gsize(gi)
    NM = p
    def w_reads(gi):
        ks, seg, kind, t = groups[gi]
        buf = WF[gi % NB]
        areg = aWf if kind == 'F' else aWh
        off = seg*160 + (t*32 if kind == 'F' else 64) + ks*16*WG_STRIDE
        return [f"ds_read_b64_tr_b16 v[{buf}:{buf+1}], v{areg} offset:{off}",
                f"ds_read_b64_tr_b16 v[{buf+2}:{buf+3}], v{areg} offset:{off + 4*WG_STRIDE}"]
    def x_reads(ks):
        return [f"ds_read_b128 v[{XF[ks]+4*i}:{XF[ks]+4*i+3}], v{aX[i>>1][ks]} offset:{(i&1)*2048}" for i in range(4)]
    def mfmas(gi, orient):
        ks, seg, kind, t = groups[gi]
        buf = WF[gi % NB]
        out = []
        for i in (range(4) if kind == 'F' else range(2)):
            acc = accF(seg, t, i) if kind == 'F' else accH(seg, i)
            x = XF[ks] + 4*i
            if orient[seg] == 'T':
                out.append(f"v_mfma_f32_16x16x32_bf16 v[{acc}:{acc+3}], v[{buf}:{buf+3}], v[{x}:{x+3}], v[{acc}:{acc+3}]")
            else:
                out.append(f"v_mfma_f32_16x16x32_bf16 v[{acc}:{acc+3}], v[{x}:{x+3}], v[{buf}:{buf+3}], v[{acc}:{acc+3}]")
        return out

    def gen_variant(orient, tag):
        def execstart(gi):
            return start[(gi, False)] if gi < NG - NPREV else NM
        def prevstart(gi): return start[(gi, True)]
        lds = []
        xr0 = x_reads(0); xr1 = x_reads(1)
        for m in range(NG):
            pm = m - NB
            if pm < 0:
                pg = pm + NG
                e = (prevstart(pg) + gsize(pg)) if pg >= NG - NPREV else 0
            else:
                e = execstart(pm) + gsize(pm)
            dl = (execstart(m) - 4) if m < NG - NPREV else NM - 4
            if m == 0:
                for q, s in enumerate(xr0): lds.append(Item(s, 0, ('x0', q), deadline=execstart(0) - 4))
            rd = w_reads(m)
            lds.append(Item(rd[0], e, ('wa', m), deadline=dl))
            lds.append(Item(rd[1], e, ('w', m), deadline=dl))
            if m == 2:
                e1 = prevstart(NG - 1) + gsize(NG - 1)
                for q, s in enumerate(xr1): lds.append(Item(s, e1, ('x1', q), deadline=execstart(9) - 4))
        dma = []
        sp = 4
        dma.append(Item(f"s_mov_b32 m0, s{sXm0}", 1))
        for j in range(4): dma.append(Item(dma_x(j), 2 + sp*j))
        dma.append(Item(f"s_mov_b32 m0, s{sWm0}", 2 + sp*3 + 1))
        for j in range(4): dma.append(Item(dma_w(j, 0), 2 + sp*(4 + j)))
        dma.append(Item(f"s_add_u32 m0, m0, {4*WG_STRIDE}", 2 + sp*7 + 1))
        for j in range(4): dma.append(Item(dma_w(j, 1), 2 + sp*(8 + j)))
        if opts.get('nodma'): dma = [d for d in dma if not d.txt.startswith('buffer')]
        e_end = 2 + sp*11 + 1
        ctl = [Item(f"s_cmp_lt_u32 s{sCnt}, {NST-2}", 0),
               Item(f"s_cselect_b32 s{SX+2}, s{sNrX}, 0", 0),
               Item(f"s_cselect_b32 s{SW+2}, s{sNrW}, 0", 0),
               Item(f"s_add_u32 s{sRd}, s{sRd}, 1", 20),
               Item(f"s_cmp_eq_u32 s{sRd}, 3", 20),
               Item(f"s_cselect_b32 s{sRd}, 0, s{sRd}", 20),
               Item(f"s_cselect_b32 s{sT}, s{sXn}, s{sXp}", 20),
               Item(f"s_cselect_b32 s{sT2}, s{sWn2}, s{sWp}", 20)]
        for ab in range(2):
            for ks in range(2):
                ctl.append(Item(f"v_add_u32 v{aX[ab][ks]}, s{sT}, v{aX[ab][ks]}", 30))
        ctl2 = [Item(f"s_add_u32 s{sXo}, s{sXo}, 128", e_end),
                Item(f"s_add_u32 s{sWo}, s{sWo}, 245760", e_end),
                Item(f"s_add_u32 s{sWo2}, s{sWo2}, 245760", e_end),
                Item(f"s_cmp_eq_u32 s{sRd}, 1", e_end),
                Item(f"s_cselect_b32 s{sT}, s{sXn}, s{sXp}", e_end),
                Item(f"s_add_u32 s{sXm0}, s{sXm0}, s{sT}", e_end),
                Item(f"s_cmp_eq_u32 s{sRd}, 1", e_end),
                Item(f"s_cselect_b32 s{sT}, s{sWn2}, s{sWp}", e_end),
                Item(f"s_add_u32 s{sWm0}, s{sWm0}, s{sT}", e_end),
                Item(f"s_add_u32 s{sCnt}, s{sCnt}, 1", e_end)]
        fixed = {}
        body_m = []; needs = {}
        for k_, gi in enumerate(order):
            prev = k_ < NPREV
            ms = mfmas(gi, orient)
            i0 = len(body_m)
            if opts.get('nomfma'): ms = [None]*len(ms)
            body_m += ms
            if not prev:
                needs[i0] = [('w', gi)] + ([('x0', 3)] if gi == 0 else []) + ([('x1', 3)] if gi == 9 else [])
                fixed[i0] = 1
        placed = schedule(NM, [ctl[:3], dma, lds, ctl[3:], ctl2], cap=2, fixed=fixed)
        tail = [f"v_add_u32 v{aWf}, s{sT2}, v{aWf}", f"v_add_u32 v{aWh}, s{sT2}, v{aWh}"]
        lg = LgkmTracker(Asm()); ids = {}
        emit_scheduled(lg.asm, body_m, placed, needs, lg, ids)
        a(".p2align 6")
        a.label(f"{name}_loop_{tag}")
        lg.asm = a; lg.done = lg.issued
        emit_scheduled(a, body_m, placed, needs, lg, ids)
        for s in tail: a.op(s)
        if opts.get('itstamp'):
            a.op("s_memtime s[96:97]")
            a.op("s_waitcnt lgkmcnt(0)")
            a.op(f"s_lshl_b32 m0, s{sCnt}, 1")
            a.op("s_nop 1")
            a.op(f"v_writelane_b32 v{vtid}, s96, m0")
            a.op("s_waitcnt vmcnt(12)")
            a.op("s_memtime s[96:97]")
            a.op("s_waitcnt lgkmcnt(0)")
            a.op(f"s_add_u32 m0, m0, 1")
            a.op("s_nop 1")
            a.op(f"v_writelane_b32 v{vtid}, s96, m0")
        a.op(f"s_cmp_lt_u32 s{sCnt}, {NST}")
        a.op("s_waitcnt vmcnt(12) lgkmcnt(0)")
        a.op("s_barrier")
        a.op(f"s_cbranch_scc1 {name}_loop_{tag}")
        for gi in range(NG - NPREV, NG):
            for s in mfmas(gi, orient): a.op(s)
        st_n = st_.n
        st_.stamp()
        a.op("s_waitcnt vmcnt(0)")
        a.op("s_barrier")
        pk = XF[0]; ad = XF[0] + 8
        cnt = 0
        for seg in range(3):
            for v in range(3):
                for i in (range(4) if v < 2 else range(2)):
                    acc = accF(seg, v, i) if v < 2 else accH(seg, i)
                    p_ = pk + 2*(cnt % 4); ad_ = ad + (cnt % 4); cnt += 1
                    if orient[seg] == 'T':
                        a.op(f"v_pk_mul_f32 v[{acc}:{acc+1}], v[{acc}:{acc+1}], s[{sSc+2*seg}:{sSc+2*seg+1}]")
                        a.op(f"v_pk_mul_f32 v[{acc+2}:{acc+3}], v[{acc+2}:{acc+3}], s[{sSc+2*seg}:{sSc+2*seg+1}]")
                        a.op(f"v_mad_u32_u24 v{ad_}, v{eT+i}, v{eS+v}, v{eA+v}")
                    a.op(f"v_cvt_pk_bf16_f32 v{p_}, v{acc}, v{acc+1}")
                    a.op(f"v_cvt_pk_bf16_f32 v{p_+1}, v{acc+2}, v{acc+3}")
                    if orient[seg] == 'T':
                        a.op(f"ds_write_b64 v{ad_}, v[{p_}:{p_+1}] offset:{seg*20480}")
                    else:
                        a.op(f"ds_write_b64 v{eV+2*v+(i>>1)}, v[{p_}:{p_+1}] offset:{seg*20480 + (i&1)*640}")
        a.op("s_waitcnt lgkmcnt(0)")
        a.op("s_barrier")
        st_.stamp()
        a.op(f"s_mul_i32 s17, s{sBr}, {BR_STRIDE}")
        a.op(f"s_mul_i32 s18, s{sWave}, 5120")
        a.op(f"v_lshlrev_b32 v{t0}, 4, v{vl}")
        a.op(f"v_add_u32 v{t1}, s18, v{t0}")
        CP = ACC
        for n in range(15):
            a.op(f"ds_read_b128 v[{CP+4*n}:{CP+4*n+3}], v{t1} offset:{(n//5)*20480 + (n%5)*1024}")
        for seg in range(3):
            a.op(f"s_mul_i32 s14, s{sJ}, 3")
            a.op(f"s_add_u32 s14, s14, {seg}")
            a.op(f"s_and_b32 s15, s14, 7")
            a.op(f"s_lshl_b32 s15, s15, 2")
            a.op(f"s_add_u32 s15, s15, s{sWave}")
            if orient[seg] == 'T':
                a.op(f"s_lshr_b32 s14, s14, 3")
                a.op(f"s_mul_i32 s18, s15, {QB}")
                a.op(f"s_lshl_b32 s18, s18, s14")
                a.op(f"s_mul_i32 s14, s14, {WS_KV - WS_Q}")
                a.op(f"s_add_u32 s14, s14, s17")
                a.op(f"s_add_u32 s14, s14, s18")
                a.op(f"s_lshl_b32 s19, s{sMt}, 11")
                a.op(f"s_add_u32 s18, s14, s19")
                a.op(f"s_lshl_b32 s19, s{sMt}, 10")
                a.op(f"s_add_u32 s26, s14, s19")
                for pc in range(5):
                    n = seg*5 + pc
                    if pc < 4: a.op(f"s_add_u32 s27, s18, {WS_Q + (pc >> 1)*32768 + (pc & 1)*1024}")
                    else: a.op(f"s_add_u32 s27, s26, {WS_Q + OFF_T}")
                    a.op(f"s_waitcnt lgkmcnt({14-n})")
                    a.op(f"buffer_store_dwordx4 v[{CP+4*n}:{CP+4*n+3}], v{t0}, s[{SWS}:{SWS+3}], s27 offen {opts.get('stflags','')}")
            else:
                a.op(f"s_mul_i32 s18, s15, {KVB}")
                a.op(f"s_mul_i32 s19, s{sMt}, 5120")
                a.op(f"s_add_u32 s18, s18, s19")
                a.op(f"s_add_u32 s18, s18, s17")
                for pc in range(5):
                    n = seg*5 + pc
                    a.op(f"s_add_u32 s27, s18, {WS_KV + OFF_V + pc*1024}")
                    a.op(f"s_waitcnt lgkmcnt({14-n})")
                    a.op(f"buffer_store_dwordx4 v[{CP+4*n}:{CP+4*n+3}], v{t0}, s[{SWS}:{SWS+3}], s27 offen {opts.get('stflags','')}")
        st_.stamp()
        if stamps:
            a.op("s_waitcnt vmcnt(0)")
            st_.stamp()
            st_.dump(SWS, sWave, t0)
            if opts.get('itstamp'):
                a.op(f"s_lshl_b32 s98, s2, 2")
                a.op(f"s_add_u32 s98, s98, s{sWave}")
                a.op(f"s_lshl_b32 s98, s98, 8")
                a.op(f"s_add_u32 s98, s98, {WS_STAMP + 5*0x40000}")
                a.op(f"v_lshlrev_b32 v{t0}, 2, v{vl}")
                a.op(f"buffer_store_dword v{vtid}, v{t0}, s[{SWS}:{SWS+3}], s98 offen")
            st_.n = st_n
        a.op("s_endpgm")

    a.op(f"s_cmp_ge_u32 s{sJ}, 6")
    a.op(f"s_cbranch_scc1 {name}_vd")
    a.op(f"s_cmp_eq_u32 s{sJ}, 5")
    a.op(f"s_cbranch_scc1 {name}_vm")
    gen_variant("TTT", "t")
    a.label(f"{name}_vm")
    gen_variant("TDD", "m")
    a.label(f"{name}_vd")
    gen_variant("DDD", "d")
    a.label(f"{name}_helper")
    a.op("s_waitcnt lgkmcnt(0)")
    a.op(f"s_cmp_eq_u32 s{sBr}, 0")
    a.op("s_cselect_b32 s4, s4, s8")
    a.op("s_cselect_b32 s5, s5, s9")
    a.op("s_cselect_b32 s6, s6, s10")
    a.op("s_cselect_b32 s7, s7, s11")
    srd(a, SX, 4, 2048*1280)
    srd(a, SW, 6, 640*3840)
    srd(a, SWS, 12, WS_SIZE)
    if not opts.get('nopf'):
        D = opts.get('pfD', 4)
        pfl = opts.get('pfflags', '')
        a.op(f"s_lshr_b32 s15, s2, 3")
        a.op(f"s_bfe_u32 s16, s2, 0x10001")
        a.op(f"s_lshl_b32 s16, s16, 5")
        a.op(f"s_add_u32 s16, s16, s15")
        a.op(f"s_mul_i32 s{sXo}, s16, 40960")
        a.op(f"s_and_b32 s16, s2, 1")
        a.op(f"s_mul_i32 s16, s16, 1920")
        a.op(f"s_mul_i32 s17, s15, {2*3840}")
        a.op(f"s_add_u32 s{sWo}, s16, s17")
        a.op(f"v_lshlrev_b32 v{t0}, 4, v{vl}")
        a.op(f"v_lshrrev_b32 v{t1}, 3, v{vl}")
        a.op(f"v_mul_u32_u24 v{t1}, 1280, v{t1}")
        a.op(f"v_and_b32 v{t2}, 7, v{vl}")
        a.op(f"v_lshl_add_u32 v{t1}, v{t2}, 4, v{t1}")
        def pf_stage():
            a.op(f"s_add_u32 s17, s{sWo}, 3840")
            a.op(f"buffer_load_dwordx4 v[40:43], v{t0}, s[{SW}:{SW+3}], s{sWo} offen {pfl}")
            a.op(f"buffer_load_dwordx4 v[44:47], v{t0}, s[{SW}:{SW+3}], s{sWo} offen offset:1024 {pfl}")
            a.op(f"buffer_load_dwordx4 v[48:51], v{t0}, s[{SW}:{SW+3}], s17 offen {pfl}")
            a.op(f"buffer_load_dwordx4 v[52:55], v{t0}, s[{SW}:{SW+3}], s17 offen offset:1024 {pfl}")
            a.op(f"s_mov_b32 s17, s{sXo}")
            for j in range(4):
                a.op(f"buffer_load_dwordx4 v[{40+4*j}:{43+4*j}], v{t1}, s[{SX}:{SX+3}], s17 offen {pfl}")
                if j < 3: a.op(f"s_add_u32 s17, s17, 10240")
            a.op(f"s_add_u32 s{sXo}, s{sXo}, 128")
            a.op(f"s_add_u32 s{sWo}, s{sWo}, 245760")
        a.op(f"s_mov_b32 s{sCnt}, 0")
        a.label(f"{name}_pf0")
        pf_stage()
        a.op(f"s_add_u32 s{sCnt}, s{sCnt}, 1")
        a.op(f"s_cmp_lt_u32 s{sCnt}, {D}")
        a.op(f"s_cbranch_scc1 {name}_pf0")
        if D < NST:
            a.label(f"{name}_pf1")
            a.op("s_barrier")
            pf_stage()
            a.op(f"s_add_u32 s{sCnt}, s{sCnt}, 1")
            a.op(f"s_cmp_lt_u32 s{sCnt}, {NST}")
            a.op(f"s_cbranch_scc1 {name}_pf1")
    a.op("s_cmp_ge_u32 s2, 32")
    a.op(f"s_cbranch_scc1 {name}_end")
    a.op("s_load_dwordx2 s[10:11], s[0:1], 40")
    hra = RegAlloc(60)
    F = kb.PhiRegs(hra)
    a.op(f"s_mov_b32 s{sMt}, s2")
    a.op(f"s_mov_b32 s{sJ}, {K1_SCR}")
    a.op("s_waitcnt lgkmcnt(0)")
    srd(a, SW, 10, 32*800)
    kb.build_phi_operands(a, F, vl, sMt, SW, sJ, [t0, t1, t2, t3, t4, t5])
    a.op(f"s_mul_i32 s14, s2, 3072")
    a.op(f"s_add_u32 s14, s14, {WS_PHI}")
    a.op(f"v_lshlrev_b32 v{t0}, 4, v{vl}")
    assert F.A2m == F.A1m + 4 and F.A1t == F.A2m + 4 and F.A2t == F.A1t + 2
    for i in range(3):
        a.op(f"buffer_store_dwordx4 v[{F.A1m+4*i}:{F.A1m+4*i+3}], v{t0}, s[{SWS}:{SWS+3}], s14 offen offset:{1024*i}")
    a.label(f"{name}_end")
    a.op("s_endpgm")
    return nv
```

```python
from common import *
from attn_loop import *
import attn_loop, kb
import struct
def f32hex(x): return "0x%08x" % struct.unpack("<I", struct.pack("<f", x))[0]
K2_LDS = 163840
PART_A = 102400
PART_W = 3840
POLL_MAX = 400

class FMap:
    pass

def gen_k2(a, name="k2_kernel", stamps=False, opts={}):
    attn_loop.SKIP = set(opts.get('skip', []))
    kernel_header(a, name)
    st_ = Stamps(a, stamps, slot=1)
    st_.stamp()
    vl = 1; t0 = 2; t1 = 3; t2 = 4; t3 = 5; t4 = 6; t5 = 7
    R = AttnRegs(8)
    X = R.end + (R.end & 1)
    mA = X; mB = X + 1
    x0 = X + 2
    PQ = x0 + 16
    KVL = PQ + 12
    vPoll = KVL + 16
    vDm = vPoll + 1
    vAdr = vDm + 1
    nv = vAdr + 3
    sWave=20; sHead=21; sQb=22; sH=23; sQs=24; sKV=25; sIt=26; sPrioA=27
    SWS=28; SDBG=32; SWO=36; sEX=40; sT=42; sT2=43; sT3=44; sQ=45; sTok=46; sKVB=47; sQB=48; sTokB=49
    sA0=50; sA2=51; sA4=52; sI4=53; sGot=54; sScr=55; sPart=56; sTb=57
    def fmap(P, Xr):
        F = FMap()
        F.A1m = R.S[0]; F.A2m = R.S[0] + 4; F.A1t = R.S[0] + 8; F.A2t = R.S[0] + 10
        F.Xm = Xr; F.Xt = Xr + 4
        F.t = R.S[1] + 12
        F.D1 = R.S[2]; F.D2 = R.S[3]; F.P = P
        return F
    FK = fmap(R.Km[0], R.S[1]); FQ = fmap(PQ, R.S[1] + 6)
    assert R.V0[0] == R.Km[0] + 8
    VA = [R.V1[0], R.V1[1]]; BT = R.Kt[0]; KVA = [R.O[0], R.O[1]]

    a.op("s_cmp_ge_u32 s2, 256")
    a.op(f"s_cbranch_scc1 {name}_end")
    a.op("s_load_dwordx4 s[8:11], s[0:1], 64")
    a.op("s_load_dwordx2 s[4:5], s[0:1], 16")
    a.op("s_load_dwordx2 s[6:7], s[0:1], 48")
    a.op(f"v_and_b32 v{vl}, 63, v0")
    a.op(f"v_lshrrev_b32 v{t0}, 6, v0")
    a.op(f"s_and_b32 s14, s2, 7")
    a.op(f"s_lshl_b32 s14, s14, 2")
    a.op(f"v_readfirstlane_b32 s{sWave}, v{t0}")
    a.op(f"s_bfe_u32 s15, s2, 0x20003")
    a.op(f"s_add_u32 s{sHead}, s14, s15")
    a.op(f"s_lshr_b32 s{sQb}, s2, 5")
    a.op(f"s_lshr_b32 s{sH}, s{sWave}, 2")
    a.op(f"s_and_b32 s{sQs}, s{sWave}, 3")
    a.op(f"s_mul_i32 s{sKV}, s{sHead}, {KVB}")
    a.op(f"s_add_u32 s{sKV}, s{sKV}, {WS_KV}")
    a.op(f"s_add_u32 s{sKVB}, s{sKV}, {BR_STRIDE}")
    a.op(f"s_mul_i32 s{sQ}, s{sHead}, {QB}")
    a.op(f"s_add_u32 s{sQ}, s{sQ}, {WS_Q}")
    a.op(f"s_add_u32 s{sQB}, s{sQ}, {BR_STRIDE}")
    a.op(f"s_lshl_b32 s{sTok}, s{sQb}, 8")
    a.op(f"s_lshl_b32 s14, s{sWave}, 5")
    a.op(f"s_add_u32 s{sTokB}, s{sTok}, s14")
    a.op(f"s_lshl_b32 s14, s{sQs}, 6")
    a.op(f"s_add_u32 s{sTok}, s{sTok}, s14")
    a.op(f"v_lshlrev_b32 v{vDm}, 4, v{vl}")
    a.op(f"v_and_b32 v{t4}, 31, v{vl}")
    a.op(f"v_lshrrev_b32 v{t5}, 5, v{vl}")
    a.op(f"v_lshlrev_b32 v{t0}, 15, v{t5}")
    a.op(f"v_lshl_add_u32 v{t0}, v{t4}, 4, v{t0}")
    a.op(f"v_lshlrev_b32 v{t1}, 3, v{t4}")
    a.op(f"v_mul_u32_u24 v{t2}, 320, v{t5}")
    a.op(f"v_lshl_add_u32 v{t2}, v{t4}, 4, v{t2}")
    a.op(f"s_lshl_b32 s14, s{sH}, 14")
    a.op(f"s_lshl_b32 s15, s{sQs}, 10")
    a.op(f"s_add_u32 s{sA0}, s14, s15")
    a.op(f"s_mul_i32 s14, s{sH}, 40960")
    a.op(f"s_lshl_b32 s16, s{sQs}, 11")
    a.op(f"s_add_u32 s{sA2}, s14, s16")
    a.op(f"s_add_u32 s{sA2}, s{sA2}, 81920")
    a.op(f"s_add_u32 s14, s14, s15")
    a.op(f"s_add_u32 s14, s14, {81920 + 8192 - 2048}")
    a.op(f"s_lshl_b32 s16, s{sH}, 13")
    a.op(f"s_add_u32 s16, s16, s15")
    a.op(f"s_add_u32 s16, s16, 65536")
    a.op(f"s_cmp_lt_u32 s{sQs}, 2")
    a.op(f"s_cselect_b32 s{sA4}, s16, s14")
    a.op(f"s_mov_b32 s15, 10240")
    a.op(f"s_cselect_b32 s{sI4}, 2048, s15")
    a.op("s_waitcnt lgkmcnt(0)")
    srd(a, SWS, 10, WS_SIZE)
    def ld_frag(dm, dt, sblk, stok):
        a.op(f"s_lshl_b32 s14, s{stok}, 4")
        a.op(f"s_add_u32 s14, s14, s{sblk}")
        a.op(f"buffer_load_dwordx4 v[{dm}:{dm+3}], v{t0}, s[{SWS}:{SWS+3}], s14 offen")
        a.op(f"s_lshl_b32 s14, s{stok}, 3")
        a.op(f"s_add_u32 s14, s14, s{sblk}")
        a.op(f"s_add_u32 s14, s14, {OFF_T}")
        a.op(f"buffer_load_dwordx2 v[{dt}:{dt+1}], v{t1}, s[{SWS}:{SWS+3}], s14 offen")
    def ld_vb(stok):
        a.op(f"s_lshr_b32 s14, s{stok}, 5")
        a.op(f"s_mul_i32 s14, s14, 1280")
        a.op(f"s_add_u32 s14, s14, s{sKVB}")
        a.op(f"s_add_u32 s14, s14, {OFF_V}")
        a.op(f"buffer_load_dwordx4 v[{VA[0]}:{VA[0]+3}], v{t2}, s[{SWS}:{SWS+3}], s14 offen")
        a.op(f"buffer_load_dwordx4 v[{VA[1]}:{VA[1]+3}], v{t2}, s[{SWS}:{SWS+3}], s14 offen offset:640")
    def ld_phi():
        a.op(f"s_mul_i32 s14, s{sHead}, 3072")
        a.op(f"s_add_u32 s14, s14, {WS_PHI}")
        for i in range(3):
            a.op(f"buffer_load_dwordx4 v[{FK.A1m+4*i}:{FK.A1m+4*i+3}], v{vDm}, s[{SWS}:{SWS+3}], s14 offen offset:{1024*i}")
    def dma_sc():
        a.op(f"s_mov_b32 m0, s{sA0}")
        a.op(f"s_add_u32 s14, s{sA0}, s{sKV}")
        a.op(f"buffer_load_dwordx4 v{vDm}, s[{SWS}:{SWS+3}], s14 offen lds")
        a.op(f"s_add_u32 m0, s{sA0}, 32768")
        a.op(f"s_add_u32 s14, s14, 32768")
        a.op(f"buffer_load_dwordx4 v{vDm}, s[{SWS}:{SWS+3}], s14 offen lds")
        a.op(f"s_mov_b32 m0, s{sA2}")
        a.op(f"s_add_u32 s14, s{sA2}, s{sKV}")
        a.op(f"buffer_load_dwordx4 v{vDm}, s[{SWS}:{SWS+3}], s14 offen lds")
        a.op(f"buffer_load_dwordx4 v{vDm}, s[{SWS}:{SWS+3}], s14 offen offset:1024 lds")
        a.op(f"s_mov_b32 m0, s{sA4}")
        a.op(f"s_add_u32 s14, s{sA4}, s{sKV}")
        a.op(f"buffer_load_dwordx4 v{vDm}, s[{SWS}:{SWS+3}], s14 offen lds")
        a.op(f"s_add_u32 s{sA0}, s{sA0}, 4096")
        a.op(f"s_add_u32 s{sA2}, s{sA2}, 10240")
        a.op(f"s_add_u32 s{sA4}, s{sA4}, s{sI4}")
    ld_frag(FK.Xm, FK.Xt, sKVB, sTokB)
    ld_vb(sTokB)
    ld_phi()
    a.op(f"s_lshl_b32 s14, s{sTok}, 4")
    a.op(f"s_add_u32 s14, s14, s{sQ}")
    a.op(f"buffer_load_dwordx4 v[{R.Qm[0]}:{R.Qm[0]+3}], v{t0}, s[{SWS}:{SWS+3}], s14 offen")
    a.op(f"buffer_load_dwordx4 v[{R.Qm[1]}:{R.Qm[1]+3}], v{t0}, s[{SWS}:{SWS+3}], s14 offen offset:512")
    a.op(f"s_lshl_b32 s14, s{sTok}, 3")
    a.op(f"s_add_u32 s14, s14, s{sQ}")
    a.op(f"s_add_u32 s14, s14, {OFF_T}")
    a.op(f"buffer_load_dwordx2 v[{R.Qlo[0]}:{R.Qlo[0]+1}], v{t1}, s[{SWS}:{SWS+3}], s14 offen")
    a.op(f"buffer_load_dwordx2 v[{R.Qlo[1]}:{R.Qlo[1]+1}], v{t1}, s[{SWS}:{SWS+3}], s14 offen offset:256")
    dma_sc()
    ld_frag(FQ.Xm, FQ.Xt, sQB, sTokB)
    srd(a, SDBG, 8, 256)
    a.op(f"s_bfe_u32 s14, s2, 0x10002")
    a.op(f"s_cmp_eq_u32 s14, 0")
    a.op("s_cselect_b32 s4, s4, s6")
    a.op("s_cselect_b32 s5, s5, s7")
    srd(a, SWO, 4, 640*1280)
    a.op(f"v_lshlrev_b32 v{R.aKm}, 15, v{t5}")
    a.op(f"v_lshl_add_u32 v{R.aKm}, v{t4}, 4, v{R.aKm}")
    a.op(f"s_lshl_b32 s14, s{sH}, 14")
    a.op(f"v_add_u32 v{R.aKm}, s14, v{R.aKm}")
    a.op(f"s_lshl_b32 s14, s{sH}, 13")
    a.op(f"s_add_u32 s14, s14, 65536")
    a.op(f"v_lshl_add_u32 v{R.aKt}, v{vl}, 3, s14")
    a.op(f"s_mul_i32 s14, s{sH}, 40960")
    a.op(f"s_add_u32 s14, s14, 81920")
    a.op(f"v_add_u32 v{R.aV}, s14, v{t2}")
    a.op(f"s_mov_b32 s{sEX}, 0x000fffff")
    a.op(f"s_mov_b32 s{sEX+1}, 0x000fffff")
    a.op(f"v_mov_b32 v{R.idx}, 0xdddd")
    a.op(f"v_mov_b32 v{mA}, 0")
    a.op(f"v_mov_b32 v{mB}, 0")
    a.op(f"s_mov_b32 s{sGot}, 0")
    a.op(f"s_lshr_b32 s14, s{sWave}, 1")
    a.op(f"s_lshl_b32 s14, s14, 14")
    a.op(f"s_and_b32 s15, s{sWave}, 1")
    a.op(f"s_mul_i32 s15, s15, 2688")
    a.op(f"s_add_u32 s{sScr}, s14, s15")
    a.op(f"s_add_u32 s{sScr}, s{sScr}, 8192")
    a.op(f"s_mul_i32 s14, s{sQs}, {PART_W}")
    a.op(f"s_mul_i32 s15, s{sH}, 40960")
    a.op(f"s_add_u32 s{sPart}, s14, s15")
    a.op(f"s_add_u32 s{sPart}, s{sPart}, {PART_A}")

    def b2_unit(first):
        a.op(f"v_cmp_eq_u32 vcc, 20, v{t4}")
        a.op(f"v_mov_b32 v{t3}, 0x3f803f80")
        for s in range(2):
            for i in range(4): a.op(f"v_cndmask_b32 v{VA[s]+i}, v{VA[s]+i}, v{t3}, vcc")
        kb.feature_map(a, FK)
        a.op(f"v_mul_u32_u24 v{t0}, 80, v{t4}")
        a.op(f"v_mul_u32_u24 v{t1}, 40, v{t5}")
        a.op(f"v_add3_u32 v{t0}, v{t0}, v{t1}, s{sScr}")
        for i in range(5):
            a.op(f"ds_write_b64 v{t0}, v[{FK.P+2*i}:{FK.P+2*i+1}] offset:{8*i}")
        a.op(f"v_and_b32 v{t0}, 15, v{vl}")
        a.op(f"v_lshrrev_b32 v{t1}, 4, v{vl}")
        a.op(f"v_lshrrev_b32 v{t2}, 1, v{t1}")
        a.op(f"v_lshlrev_b32 v{t2}, 3, v{t2}")
        a.op(f"v_lshrrev_b32 v{t3}, 2, v{t0}")
        a.op(f"v_add_u32 v{t2}, v{t2}, v{t3}")
        a.op(f"v_mul_u32_u24 v{t2}, 80, v{t2}")
        a.op(f"v_and_b32 v{t1}, 1, v{t1}")
        a.op(f"v_lshlrev_b32 v{t1}, 5, v{t1}")
        a.op(f"v_and_b32 v{t0}, 3, v{t0}")
        a.op(f"v_lshl_add_u32 v{t1}, v{t0}, 3, v{t1}")
        a.op(f"v_add3_u32 v{t2}, v{t2}, v{t1}, s{sScr}")
        a.op("s_waitcnt lgkmcnt(0)")
        bts = [BT, FK.D1, FK.D1 + 4, FK.D1 + 8]
        k_ = 0
        for s in range(2):
            for ct in range(2):
                b = bts[k_]; k_ += 1
                a.op(f"ds_read_b64_tr_b16 v[{b}:{b+1}], v{t2} offset:{s*16*80 + ct*64}")
                a.op(f"ds_read_b64_tr_b16 v[{b+2}:{b+3}], v{t2} offset:{s*16*80 + 4*80 + ct*64}")
        k_ = 0
        for s in range(2):
            for ct in range(2):
                b = bts[k_]; k_ += 1
                a.op(f"s_waitcnt lgkmcnt({6 - 2*(k_-1)})")
                c = "0" if (first and s == 0) else f"v[{KVA[ct]}:{KVA[ct]+15}]"
                a.op(f"v_mfma_f32_32x32x16_bf16 v[{KVA[ct]}:{KVA[ct]+15}], v[{VA[s]}:{VA[s]+3}], v[{b}:{b+3}], {c}")
    def b2_write_partial():
        a.op(f"v_lshlrev_b32 v{t0}, 9, v{t5}")
        a.op(f"v_lshl_add_u32 v{t0}, v{t4}, 2, v{t0}")
        a.op(f"v_add_u32 v{t0}, s{sPart}, v{t0}")
        a.op(f"v_lshlrev_b32 v{t1}, 7, v{t5}")
        a.op(f"v_lshl_add_u32 v{t1}, v{t4}, 2, v{t1}")
        a.op(f"v_add_u32 v{t1}, s{sPart}, v{t1}")
        for r in range(12):
            d = 8*(r >> 2) + (r & 3)
            a.op(f"ds_write_b32 v{t0}, v{KVA[0]+r} offset:{d*128}")
        a.op("s_mov_b32 exec_lo, 0xff")
        a.op("s_mov_b32 exec_hi, 0xff")
        for r in range(12):
            d = 8*(r >> 2) + (r & 3)
            a.op(f"ds_write_b32 v{t1}, v{KVA[1]+r} offset:{3072 + d*32}")
        a.op("s_mov_b64 exec, -1")
    def b2_reduce(dst):
        for e in range(2):
            ii, dd, ff, ad = x0, x0+1, x0+2, x0+3
            a.op(f"v_add_u32 v{ii}, {512*e}, v0")
            a.op(f"v_mul_u32_u24 v{dd}, 1639, v{ii}")
            a.op(f"v_lshrrev_b32 v{dd}, 16, v{dd}")
            a.op(f"v_mul_u32_u24 v{ff}, 40, v{dd}")
            a.op(f"v_sub_u32 v{ff}, v{ii}, v{ff}")
            a.op(f"v_lshlrev_b32 v{ad}, 7, v{dd}")
            a.op(f"v_lshl_add_u32 v{ad}, v{ff}, 2, v{ad}")
            a.op(f"v_lshlrev_b32 v{dd}, 5, v{dd}")
            a.op(f"v_lshl_add_u32 v{dd}, v{ff}, 2, v{dd}")
            a.op(f"v_add_u32 v{dd}, {3072 - 128}, v{dd}")
            a.op(f"v_cmp_lt_u32 vcc, 31, v{ff}")
            a.op(f"v_cndmask_b32 v{ad}, v{ad}, v{dd}, vcc")
            a.op(f"v_min_u32 v{ad}, {PART_W - 4}, v{ad}")
            a.op(f"v_add_u32 v{ad}, {PART_A}, v{ad}")
            for w in range(8):
                a.op(f"ds_read_b32 v{x0+4+w}, v{ad} offset:{(w & 3)*PART_W + (w >> 2)*40960}")
            a.op(f"v_lshlrev_b32 v{t2+e}, 2, v{ii}")
            a.op(f"v_cmp_gt_u32 vcc, 840, v{ii}")
            a.op(f"v_mov_b32 v{ii}, 0x40000000")
            a.op(f"v_cndmask_b32 v{t2+e}, v{ii}, v{t2+e}, vcc")
            a.op("s_waitcnt lgkmcnt(0)")
            a.op(f"v_add_f32 v{dst+e}, v{x0+4}, v{x0+5}")
            for w in range(2, 8):
                a.op(f"v_add_f32 v{dst+e}, v{dst+e}, v{x0+4+w}")
    a.op("s_waitcnt vmcnt(11)")
    b2_unit(True)
    a.op("s_waitcnt vmcnt(0)")
    st_.stamp()
    kb.feature_map(a, FQ)
    b2_write_partial()
    a.op(f"v_cmp_gt_u32 vcc, 32, v{vl}")
    for q in range(2):
        for i in range(2):
            a.op(f"v_cndmask_b32 v{R.Qhi[q]+i}, v{R.Qlo[q]+i}, 0, vcc")
            a.op(f"v_cndmask_b32 v{R.Qlo[q]+i}, 0, v{R.Qlo[q]+i}, vcc")
    a.op("s_waitcnt lgkmcnt(0)")
    a.op("s_barrier")
    dma_sc()
    b2_reduce(x0 + 12)
    a.op(f"s_lshl_b32 s14, s{sHead}, 3")
    a.op(f"s_add_u32 s14, s14, s{sQb}")
    a.op(f"s_mul_i32 s14, s14, {kb.PART_BYTES}")
    a.op(f"s_add_u32 s14, s14, {WS_KVP}")
    for e in range(2):
        a.op(f"buffer_store_dword v{x0+12+e}, v{t2+e}, s[{SWS}:{SWS+3}], s14 offen sc1")
    a.op(f"v_cmp_eq_u32 vcc, 20, v{t4}")
    a.op(f"v_mov_b32 v{t3}, 0x3f803f80")
    a.op(f"v_cndmask_b32 v{t3}, 0, v{t3}, vcc")
    for buf in R.V0 + R.V1:
        for i in range(4): a.op(f"v_mov_b32 v{buf+i}, v{t3}")
    for q in range(2):
        for i in range(16): a.op(f"v_mov_b32 v{R.O[q]+i}, 0")
    for i in range(8, 16): a.op(f"v_mov_b32 v{R.S[3]+i}, 0")
    a.op(f"s_cmp_eq_u32 s{sH}, 0")
    a.op(f"s_cselect_b32 s{sPrioA}, 1, 0")
    st_.stamp()
    if opts.get('rtloop'): st_.real(0)
    def prologue_reads():
        rd_km(a, R, 0, 0); rd_km(a, R, 1, 0); rd_kt(a, R, 0, 0)
        a.op(f"s_mov_b64 exec, s[{sEX}:{sEX+1}]")
        rd_v(a, R, 0, 0, 0); rd_v(a, R, 0, 1, 0)
        a.op("s_mov_b64 exec, -1")
        a.op("s_waitcnt lgkmcnt(0)")
    prologue_reads()
    qk_main(a, R, 0, 0); qk_tail(a, R, 0, 0)
    prio = opts.get('prio', True)
    if prio:
        a.op(f"s_cmp_eq_u32 s{sPrioA}, 0")
        a.op(f"s_cbranch_scc1 {name}_pB")
        a.op("s_setprio 2")
        a.op(f"s_branch {name}_pC")
        a.label(f"{name}_pB")
        a.op("s_setprio 1")
        a.label(f"{name}_pC")
    a.op("s_nop 7"); a.op("s_nop 3")
    a.op(f"s_mov_b32 s{sIt}, 0")
    def hook_main():
        a.op(f"s_branch {name}_hook")
        a.label(f"{name}_hookret")
    def hook_prio():
        if not prio: return
        a.op(f"s_cmp_eq_u32 s{sPrioA}, 0")
        a.op(f"s_cbranch_scc1 {name}_noprio")
        a.op("s_setprio 0")
        a.label(f"{name}_noprio")
    a(".p2align 6")
    a.label(f"{name}_loop")
    loop_body(a, R, {'sexec': sEX}, hooks={opts.get('barslot', 8): hook_main, opts.get('prioslot', 5): hook_prio})
    a.op(f"v_add_u32 v{R.aKm}, 4096, v{R.aKm}")
    a.op(f"v_add_u32 v{R.aKt}, 2048, v{R.aKt}")
    a.op(f"v_add_u32 v{R.aV}, 10240, v{R.aV}")
    a.op(f"s_add_u32 s{sIt}, s{sIt}, 1")
    a.op(f"s_cmp_lt_u32 s{sIt}, 4")
    a.op(f"s_cbranch_scc1 {name}_loop")
    pv(a, R, 63, 1)
    a.op("s_waitcnt lgkmcnt(0)")
    a.op("s_nop 7"); a.op("s_nop 7")
    st_.stamp()
    if opts.get('rtloop'): st_.real(1)
    a.op(f"v_mov_b32 v{x0}, 0")
    a.op(f"v_mov_b32 v{x0+1}, 0")
    a.op(f"s_mov_b32 s14, 0"); a.op(f"s_mov_b32 s15, 0")
    for q in range(2):
        for i in range(0, 12, 2):
            a.op(f"v_pk_fma_f32 v[{x0}:{x0+1}], v[{R.O[q]+i}:{R.O[q]+i+1}], s[14:15], v[{x0}:{x0+1}]")
    a.op(f"v_add_f32 v{x0}, v{x0}, v{x0+1}")
    a.op(f"v_cmp_u_f32 s[16:17], v{x0}, v{x0}")
    a.op(f"s_mov_b32 s14, {f32hex(2.0**-24)}")
    a.op(f"s_mov_b32 s15, {f32hex(2.0**100)}")
    a.op(f"v_min_f32 v{x0+2}, v{R.O[0]+8}, v{R.O[1]+8}")
    a.op(f"v_max_f32 v{x0+3}, v{R.O[0]+8}, v{R.O[1]+8}")
    a.op(f"v_cmp_gt_f32 s[18:19], s14, v{x0+2}")
    a.op(f"v_cmp_lt_f32 vcc, s15, v{x0+3}")
    a.op("s_nop 1")
    a.op("s_or_b64 s[18:19], s[18:19], vcc")
    a.op("s_and_b32 s18, s18, 0")
    a.op("s_or_b64 s[16:17], s[16:17], s[18:19]")
    if opts.get('force_fallback'): a.op("s_mov_b64 s[16:17], -1")
    if opts.get('no_fallback'): a.op("s_mov_b64 s[16:17], 0")
    a.op("s_cmp_lg_u64 s[16:17], 0")
    a.op(f"s_cbranch_scc1 {name}_fb")
    a.label(f"{name}_ok")
    a.op(f"s_cmp_eq_u32 s{sGot}, 0")
    a.op(f"s_cbranch_scc1 {name}_slowpoll")
    a.label(f"{name}_ok2")
    a.op("s_setprio 0")
    a.op("s_barrier")
    a.op(f"s_cmp_eq_u32 s{sH}, 0")
    a.op(f"s_cbranch_scc1 {name}_noswap")
    for i in range(12):
        a.op(f"v_swap_b32 v{R.O[0]+i}, v{R.O[1]+i}")
    a.op(f"v_swap_b32 v{mA}, v{mB}")
    a.label(f"{name}_noswap")
    a.op(f"s_lshl_b32 s14, s{sWave}, 12")
    a.op(f"v_add_u32 v{t0}, s14, v{vDm}")
    a.op(f"v_lshl_add_u32 v{t1}, v{vl}, 2, s14")
    for j in range(3):
        a.op(f"ds_write_b128 v{t0}, v[{R.O[1]+4*j}:{R.O[1]+4*j+3}] offset:{j*1024}")
    a.op(f"ds_write_b32 v{t1}, v{mB} offset:3072")
    FLG = 36864
    a.op(f"v_mov_b32 v{t2}, s{sGot}")
    a.op(f"s_lshl_b32 s14, s{sWave}, 2")
    a.op(f"v_mov_b32 v{t3}, s14")
    a.op(f"ds_write_b32 v{t3}, v{t2} offset:{FLG}")
    KVI = 32768
    for i in range(4): a.op(f"v_mov_b32 v{x0+8+i}, 0")
    a.op(f"v_lshlrev_b32 v{t2}, 4, v0")
    a.op(f"v_min_u32 v{t2}, {3072-16}, v{t2}")
    a.op(f"ds_write_b128 v{t2}, v[{x0+8}:{x0+11}] offset:{KVI}")
    a.op("s_waitcnt lgkmcnt(0)")
    a.op("s_barrier")
    a.op(f"v_xor_b32 v{t0}, 16384, v{t0}")
    a.op(f"v_xor_b32 v{t1}, 16384, v{t1}")
    for j in range(3):
        a.op(f"ds_read_b128 v[{R.O[1]+4*j}:{R.O[1]+4*j+3}], v{t0} offset:{j*1024}")
    a.op(f"ds_read_b32 v{mB}, v{t1} offset:3072")
    a.op(f"v_and_b32 v{t2}, 7, v{vl}")
    a.op(f"v_lshlrev_b32 v{t2}, 2, v{t2}")
    a.op(f"ds_read_b32 v{vPoll}, v{t2} offset:{FLG}")
    adr = [vAdr, vAdr+1, vAdr+2]
    a.op(f"s_mul_i32 s14, s{sHead}, 5")
    a.op(f"v_add_u32 v{t3}, s14, v{t5}")
    for aa in range(3):
        a.op(f"v_add_u32 v{x0}, {2*aa}, v{t3}")
        a.op(f"v_lshrrev_b32 v{x0+1}, 1, v{x0}")
        a.op(f"v_lshlrev_b32 v{x0+1}, 15, v{x0+1}")
        a.op(f"v_and_b32 v{x0}, 1, v{x0}")
        a.op(f"v_lshl_add_u32 v{x0+1}, v{x0}, 3, v{x0+1}")
        a.op(f"v_lshl_add_u32 v{adr[aa]}, v{t4}, 4, v{x0+1}")
    a.op(f"v_cmp_gt_u32 vcc, 32, v{vl}")
    a.op(f"v_mov_b32 v{x0}, 0x40000000")
    a.op(f"v_cndmask_b32 v{adr[2]}, v{x0}, v{adr[2]}, vcc")
    a.op(f"s_lshl_b32 s14, s{sH}, 5")
    a.op(f"s_add_u32 s14, s14, s{sTok}")
    a.op(f"s_lshl_b32 s14, s14, 4")
    a.op(f"s_add_u32 s{sT3}, s14, {WS_OI}")
    a.op("s_waitcnt lgkmcnt(0)")
    a.op(f"v_max_f32 v{x0}, v{mA}, v{mB}")
    a.op(f"v_sub_f32 v{x0+1}, v{mA}, v{x0}")
    a.op(f"v_sub_f32 v{x0+2}, v{mB}, v{x0}")
    a.op(f"v_exp_f32 v{x0+1}, v{x0+1}")
    a.op(f"v_exp_f32 v{x0+2}, v{x0+2}")
    a.op("s_nop 0")
    for i in range(12):
        a.op(f"v_mul_f32 v{R.O[0]+i}, v{R.O[0]+i}, v{x0+1}")
        a.op(f"v_fmac_f32 v{R.O[0]+i}, v{R.O[1]+i}, v{x0+2}")
    def normalize_store(O, eps, soff, pk):
        a.op(f"v_mov_b32 v{x0}, v{O+8}")
        a.op(f"v_mov_b32 v{x0+1}, v{O+8}")
        a.op("s_nop 1")
        a.op(f"v_permlane32_swap_b32 v{x0}, v{x0+1}")
        a.op("s_nop 1")
        if eps: a.op(f"v_add_f32 v{x0+1}, {f32hex(eps)}, v{x0+1}")
        a.op(f"v_rcp_f32 v{x0+1}, v{x0+1}")
        a.op("s_nop 0")
        a.op(f"v_mov_b32 v{x0}, v{x0+1}")
        for i in range(0, 12, 2):
            a.op(f"v_pk_mul_f32 v[{O+i}:{O+i+1}], v[{O+i}:{O+i+1}], v[{x0}:{x0+1}]")
        for j in range(6):
            a.op(f"v_cvt_pk_bf16_f32 v{pk+j}, v{O+2*j}, v{O+2*j+1}")
        for aa in range(3):
            a.op(f"buffer_store_dwordx2 v[{pk+2*aa}:{pk+2*aa+1}], v{adr[aa]}, s[{SWS}:{SWS+3}], s{soff} offen {opts.get('ostflags','')}")
    normalize_store(R.O[0], 0, sT3, R.O[1])
    a.op(f"v_cmp_eq_u32 vcc, 2, v{vPoll}")
    a.op("s_nop 1")
    a.op("s_cmp_lg_u64 vcc, 0")
    a.op(f"s_cbranch_scc1 {name}_recompute")
    a.label(f"{name}_gotparts")
    a.op("s_waitcnt vmcnt(3)")
    for e in range(2):
        for p in range(1, 8):
            a.op(f"v_add_f32 v{KVL+8*e}, v{KVL+8*e}, v{KVL+8*e+p}")
    a.label(f"{name}_summed")
    for e in range(2):
        a.op(f"v_cvt_pk_bf16_f32 v{KVL+8*e}, v{KVL+8*e}, v{KVL+8*e}")
        a.op(f"v_add_u32 v{t0}, {512*e}, v0")
        a.op(f"v_mul_u32_u24 v{t1}, 1639, v{t0}")
        a.op(f"v_lshrrev_b32 v{t1}, 16, v{t1}")
        a.op(f"v_mul_u32_u24 v{t2}, 40, v{t1}")
        a.op(f"v_sub_u32 v{t2}, v{t0}, v{t2}")
        a.op(f"v_mul_u32_u24 v{t1}, 96, v{t1}")
        a.op(f"v_lshl_add_u32 v{t1}, v{t2}, 1, v{t1}")
        a.op(f"v_cmp_lt_u32 vcc, 19, v{t2}")
        a.op(f"v_mov_b32 v{t3}, 8")
        a.op(f"v_cndmask_b32 v{t3}, 0, v{t3}, vcc")
        a.op(f"v_add_u32 v{t1}, v{t1}, v{t3}")
        a.op(f"v_cmp_gt_u32 vcc, 840, v{t0}")
        a.op(f"v_mov_b32 v{t3}, 3072")
        a.op(f"v_cndmask_b32 v{t1}, v{t3}, v{t1}, vcc")
        a.op(f"ds_write_b16 v{t1}, v{KVL+8*e} offset:{KVI}")
    a.op(f"v_mul_u32_u24 v{t0}, 96, v{t4}")
    a.op(f"v_mul_u32_u24 v{t1}, 48, v{t5}")
    a.op(f"v_add_u32 v{t0}, v{t0}, v{t1}")
    a.op(f"s_lshl_b32 s14, s{sTokB}, 4")
    a.op(f"s_add_u32 s{sT3}, s14, {WS_OI + OI_STRIDE}")
    a.op("s_waitcnt lgkmcnt(0)")
    a.op("s_barrier")
    KA = R.S[0]; OD = R.S[2]
    for j in range(3):
        a.op(f"ds_read_b128 v[{KA+4*j}:{KA+4*j+3}], v{t0} offset:{KVI + 16*j}")
    for j in range(3):
        a.op(f"s_waitcnt lgkmcnt({2-j})")
        c = "0" if j == 0 else f"v[{OD}:{OD+15}]"
        a.op(f"v_mfma_f32_32x32x16_bf16 v[{OD}:{OD+15}], v[{KA+4*j}:{KA+4*j+3}], v[{PQ+4*j}:{PQ+4*j+3}], {c}")
    a.op("s_nop 7"); a.op("s_nop 3")
    normalize_store(OD, 1e-6, sT3, R.S[1])
    st_.stamp()
    if stamps:
        a.op("s_waitcnt vmcnt(0)")
        st_.stamp()
        st_.dump(SWS, sWave, t0)
    a.op("s_endpgm")

    a.label(f"{name}_hook")
    a.op(f"s_cmp_eq_u32 s{sIt}, 3")
    a.op(f"s_cbranch_scc1 {name}_hook3")
    a.op("s_waitcnt vmcnt(0)")
    a.op("s_barrier")
    if prio:
        a.op(f"s_cmp_eq_u32 s{sPrioA}, 0")
        a.op(f"s_cbranch_scc1 {name}_hk1")
        a.op("s_setprio 2")
        a.label(f"{name}_hk1")
    a.op(f"s_cmp_eq_u32 s{sIt}, 2")
    a.op(f"s_cbranch_scc1 {name}_hook2")
    dma_sc()
    a.op(f"s_add_u32 s14, s{sIt}, s{sWave}")
    a.op(f"s_cmp_lg_u32 s14, 0")
    a.op(f"s_cbranch_scc1 {name}_hookret")
    a.op(f"v_mov_b32 v{t0}, 1")
    a.op(f"s_lshl_b32 s14, s{sHead}, 2")
    a.op(f"v_mov_b32 v{t1}, s14")
    a.op("s_mov_b64 exec, 1")
    if not opts.get('nopublish'):
        a.op(f"buffer_atomic_add v{t0}, v{t1}, s[{SDBG}:{SDBG+3}], 0 offen")
    a.op("s_mov_b64 exec, -1")
    a.op(f"s_branch {name}_hookret")
    a.label(f"{name}_hook2")
    a.op(f"s_lshl_b32 s14, s{sHead}, 2")
    a.op(f"v_mov_b32 v{t1}, s14")
    a.op(f"buffer_load_dword v{vPoll}, v{t1}, s[{SDBG}:{SDBG+3}], 0 offen sc1")
    a.op(f"s_lshr_b32 s14, s2, 3")
    a.op(f"s_mul_i32 s14, s14, 25600")
    a.op(f"s_mul_i32 s15, s{sWave}, 3200")
    a.op(f"s_add_u32 s14, s14, s15")
    for j in range(4):
        a.op(f"buffer_load_dwordx4 v[{KVL+4*j}:{KVL+4*j+3}], v{vDm}, s[{SWO}:{SWO+3}], s14 offen offset:{1024*j}")
    a.op(f"s_branch {name}_hookret")
    def issue_part_loads():
        a.op(f"s_lshl_b32 s14, s{sHead}, 3")
        a.op(f"s_mul_i32 s14, s14, {kb.PART_BYTES}")
        a.op(f"s_add_u32 s14, s14, {WS_KVP}")
        for e in range(2):
            a.op(f"v_add_u32 v{t0}, {512*e}, v0")
            a.op(f"v_lshlrev_b32 v{t1}, 2, v{t0}")
            a.op(f"v_cmp_gt_u32 vcc, 840, v{t0}")
            a.op(f"v_mov_b32 v{t2}, 0x40000000")
            a.op(f"v_cndmask_b32 v{t1}, v{t2}, v{t1}, vcc")
            for p in range(8):
                a.op(f"s_add_u32 s15, s14, {p*kb.PART_BYTES}")
                a.op(f"buffer_load_dword v{KVL+8*e+p}, v{t1}, s[{SWS}:{SWS+3}], s15 offen sc1")
    a.label(f"{name}_hook3")
    a.op("s_waitcnt vmcnt(0)")
    a.op(f"v_readfirstlane_b32 s14, v{vPoll}")
    a.op("s_nop 3")
    a.op(f"s_cmp_lg_u32 s14, 8")
    a.op(f"s_cbranch_scc1 {name}_hookret")
    a.op(f"s_mov_b32 s{sGot}, 1")
    issue_part_loads()
    a.op(f"s_branch {name}_hookret")

    a.label(f"{name}_slowpoll")
    a.op(f"s_mov_b32 s{sIt}, 0")
    a.op(f"s_lshl_b32 s14, s{sHead}, 2")
    a.op(f"v_mov_b32 v{t1}, s14")
    a.label(f"{name}_sp1")
    a.op(f"buffer_load_dword v{vPoll}, v{t1}, s[{SDBG}:{SDBG+3}], 0 offen sc1")
    a.op("s_waitcnt vmcnt(0)")
    a.op(f"v_readfirstlane_b32 s14, v{vPoll}")
    a.op("s_nop 3")
    a.op(f"s_cmp_eq_u32 s14, 8")
    a.op(f"s_cbranch_scc1 {name}_sp2")
    a.op("s_sleep 8")
    a.op(f"s_add_u32 s{sIt}, s{sIt}, 1")
    a.op(f"s_cmp_lt_u32 s{sIt}, {opts.get('pollmax', POLL_MAX)}")
    a.op(f"s_cbranch_scc1 {name}_sp1")
    a.op(f"s_mov_b32 s{sGot}, 2")
    a.op(f"s_branch {name}_ok2")
    a.label(f"{name}_sp2")
    a.op(f"s_mov_b32 s{sGot}, 1")
    issue_part_loads()
    a.op(f"s_branch {name}_ok2")

    a.label(f"{name}_recompute")
    a.op("s_waitcnt vmcnt(0)")
    a.op("s_barrier")
    ld_phi()
    for q in range(2):
        for i in range(16): a.op(f"v_mov_b32 v{KVA[q]+i}, 0")
    a.op(f"s_mov_b32 s{sTb}, 0")
    a.label(f"{name}_rc1")
    a.op(f"v_lshlrev_b32 v{t0}, 15, v{t5}")
    a.op(f"v_lshl_add_u32 v{t0}, v{t4}, 4, v{t0}")
    a.op(f"v_lshlrev_b32 v{t1}, 3, v{t4}")
    a.op(f"v_mul_u32_u24 v{t2}, 320, v{t5}")
    a.op(f"v_lshl_add_u32 v{t2}, v{t4}, 4, v{t2}")
    a.op(f"s_lshl_b32 s{sT2}, s{sTb}, 8")
    a.op(f"s_lshl_b32 s14, s{sWave}, 5")
    a.op(f"s_add_u32 s{sT2}, s{sT2}, s14")
    ld_frag(FK.Xm, FK.Xt, sKVB, sT2)
    ld_vb(sT2)
    a.op("s_waitcnt vmcnt(0)")
    b2_unit(False)
    a.op("s_nop 7"); a.op("s_nop 7")
    a.op(f"s_add_u32 s{sTb}, s{sTb}, 1")
    a.op(f"s_cmp_lt_u32 s{sTb}, 8")
    a.op(f"s_cbranch_scc1 {name}_rc1")
    b2_write_partial()
    a.op("s_waitcnt lgkmcnt(0)")
    a.op("s_barrier")
    b2_reduce(x0 + 12)
    a.op(f"v_mov_b32 v{KVL}, v{x0+12}")
    a.op(f"v_mov_b32 v{KVL+8}, v{x0+13}")
    a.op(f"s_branch {name}_summed")

    a.label(f"{name}_fb")
    a.op(f"v_subrev_u32 v{R.aKm}, {4*4096}, v{R.aKm}")
    a.op(f"v_subrev_u32 v{R.aKt}, {4*2048}, v{R.aKt}")
    a.op(f"v_subrev_u32 v{R.aV}, {4*10240}, v{R.aV}")
    a.op(f"v_mov_b32 v{mA}, 0xff800000")
    a.op(f"v_mov_b32 v{mB}, 0xff800000")
    fK = x0 + 4; fT = x0 + 5; fV = x0 + 6
    def fb_qk():
        a.op(f"ds_read_b128 {vr(R.Km[0],4)}, {vr(fK)}")
        a.op(f"ds_read_b128 {vr(R.Km[1],4)}, {vr(fK)} offset:512")
        a.op(f"ds_read_b64 {vr(R.Kt[0],2)}, {vr(fT)}")
        a.op("s_waitcnt lgkmcnt(0)")
        for u in range(2):
            for q in range(2):
                S = R.S[2*u + q]
                a.op(f"v_mfma_f32_32x32x16_bf16 {vr(S,16)}, {vr(R.Km[u],4)}, {vr(R.Qm[q],4)}, 0")
                a.op(f"v_mfma_f32_32x32x8bf16_1k {vr(S,16)}, {vr(R.Kt[0],2)}, {vr((R.Qhi if u else R.Qlo)[q],2)}, {vr(S,16)}")
        a.op("s_nop 7"); a.op("s_nop 7")
    a.op(f"v_mov_b32 v{fK}, v{R.aKm}"); a.op(f"v_mov_b32 v{fT}, v{R.aKt}")
    a.op(f"s_mov_b32 s{sIt}, 0")
    a.label(f"{name}_fb1")
    fb_qk()
    for u in range(2):
        for q in range(2):
            S = R.S[2*u + q]; m = mA if q == 0 else mB
            for i in range(0, 16, 2):
                a.op(f"v_max3_f32 v{m}, v{S+i}, v{S+i+1}, v{m}")
    a.op(f"v_add_u32 v{fK}, 1024, v{fK}"); a.op(f"v_add_u32 v{fT}, 512, v{fT}")
    a.op(f"s_add_u32 s{sIt}, s{sIt}, 1")
    a.op(f"s_cmp_lt_u32 s{sIt}, 16")
    a.op(f"s_cbranch_scc1 {name}_fb1")
    for m in (mA, mB):
        a.op(f"v_mov_b32 v{x0}, v{m}")
        a.op(f"v_mov_b32 v{x0+1}, v{m}")
        a.op("s_nop 1")
        a.op(f"v_permlane32_swap_b32 v{x0}, v{x0+1}")
        a.op("s_nop 1")
        a.op(f"v_max_f32 v{m}, v{x0}, v{x0+1}")
    for q in range(2):
        for i in range(16): a.op(f"v_mov_b32 v{R.O[q]+i}, 0")
    a.op(f"v_mov_b32 v{fK}, v{R.aKm}"); a.op(f"v_mov_b32 v{fT}, v{R.aKt}"); a.op(f"v_mov_b32 v{fV}, v{R.aV}")
    a.op(f"s_mov_b32 s{sIt}, 0")
    a.label(f"{name}_fb2")
    a.op(f"s_mov_b64 exec, s[{sEX}:{sEX+1}]")
    for u in range(2):
        a.op(f"ds_read_b128 {vr(R.V0[u],4)}, {vr(fV)} offset:{u*1280}")
        a.op(f"ds_read_b128 {vr(R.V1[u],4)}, {vr(fV)} offset:{u*1280+640}")
    a.op("s_mov_b64 exec, -1")
    fb_qk()
    for u in range(2):
        for q in range(2):
            S = R.S[2*u + q]; m = mA if q == 0 else mB
            for i in range(16):
                a.op(f"v_sub_f32 v{S+i}, v{S+i}, v{m}")
            for i in range(16):
                a.op(f"v_exp_f32 v{S+i}, v{S+i}")
            a.op("s_nop 1")
            a.op(f"v_smfmac_f32_32x32x32_bf16 {vr(R.O[q],16)}, {vr(R.V0[u],4)}, {vr(S,8)}, {vr(R.idx)}")
            a.op(f"v_smfmac_f32_32x32x32_bf16 {vr(R.O[q],16)}, {vr(R.V1[u],4)}, {vr(S+8,8)}, {vr(R.idx)}")
    a.op(f"v_add_u32 v{fK}, 1024, v{fK}"); a.op(f"v_add_u32 v{fT}, 512, v{fT}"); a.op(f"v_add_u32 v{fV}, 2560, v{fV}")
    a.op(f"s_add_u32 s{sIt}, s{sIt}, 1")
    a.op(f"s_cmp_lt_u32 s{sIt}, 16")
    a.op(f"s_cbranch_scc1 {name}_fb2")
    a.op("s_nop 7"); a.op("s_nop 7")
    a.op(f"s_branch {name}_ok")
    a.label(f"{name}_end")
    a.op("s_endpgm")
    return nv
```

```python
from common import *
K3_W = 102400
K3_LDS = K3_W + 20480

def gen_k3(a, name="k3_kernel", stamps=False, opts={}):
    kernel_header(a, name)
    st_ = Stamps(a, stamps, slot=2)
    st_.stamp()
    ra = RegAlloc(1)
    vl = ra.get(1); t0 = ra.get(1); t1 = ra.get(1); t2 = ra.get(1); t3 = ra.get(1); t4 = ra.get(1)
    vw = ra.get(5)
    vo = ra.get(1)
    vout = ra.get(5)
    aW = ra.get(1); aS = ra.get(1)
    NB = 4
    WF = [ra.get(4, 4) for _ in range(NB)]
    ACC = ra.get(40, 4)
    OF = ra.get(96, 4)
    nv = ra.n
    sWave=20; sBr=21; sMt=22; sNt=23; SO=28; SW=32; SOUT=36; sT=40; sT2=41
    a.op("s_cmp_ge_u32 s2, 256")
    a.op(f"s_cbranch_scc1 {name}_end")
    a.op("s_load_dwordx2 s[4:5], s[0:1], 16")
    a.op("s_load_dwordx2 s[6:7], s[0:1], 48")
    a.op("s_load_dwordx2 s[8:9], s[0:1], 56")
    a.op("s_load_dwordx2 s[12:13], s[0:1], 72")
    a.op(f"v_and_b32 v{vl}, 63, v0")
    a.op(f"v_lshrrev_b32 v{t0}, 6, v0")
    a.op(f"s_and_b32 s14, s2, 7")
    a.op(f"s_lshr_b32 s15, s2, 3")
    a.op(f"v_readfirstlane_b32 s{sWave}, v{t0}")
    a.op(f"s_lshr_b32 s{sBr}, s14, 2")
    a.op(f"s_and_b32 s16, s14, 3")
    a.op(f"s_lshl_b32 s16, s16, 2")
    a.op(f"s_and_b32 s17, s15, 3")
    a.op(f"s_add_u32 s{sMt}, s16, s17")
    a.op(f"s_lshr_b32 s{sNt}, s15, 2")
    a.op(f"s_lshl_b32 s16, s{sMt}, 7")
    a.op(f"s_lshl_b32 s17, s{sWave}, 5")
    a.op(f"s_add_u32 s16, s16, s17")
    a.op(f"v_and_b32 v{t0}, 15, v{vl}")
    a.op(f"v_add_u32 v{t0}, s16, v{t0}")
    a.op(f"v_lshrrev_b32 v{t1}, 4, v{vl}")
    a.op(f"v_lshlrev_b32 v{t1}, 15, v{t1}")
    a.op(f"v_lshl_add_u32 v{vo}, v{t0}, 4, v{t1}")
    a.op(f"s_mul_i32 s17, s{sNt}, 160")
    a.op(f"s_mul_i32 s18, s16, 2560")
    a.op(f"s_mul_i32 s19, s{sBr}, 1280")
    a.op(f"s_add_u32 s18, s18, s19")
    a.op(f"s_add_u32 s18, s18, s17")
    for m in range(5):
        a.op(f"v_add_u32 v{t0}, {64*m}, v{vl}")
        a.op(f"v_mul_u32_u24 v{t1}, 6554, v{t0}")
        a.op(f"v_lshrrev_b32 v{t1}, 16, v{t1}")
        a.op(f"v_mul_u32_u24 v{t2}, 10, v{t1}")
        a.op(f"v_sub_u32 v{t2}, v{t0}, v{t2}")
        a.op(f"v_lshlrev_b32 v{t2}, 4, v{t2}")
        a.op(f"v_mul_u32_u24 v{t3}, 2560, v{t1}")
        a.op(f"v_add3_u32 v{vout+m}, v{t3}, v{t2}, s18")
        a.op(f"v_and_b32 v{t3}, 4, v{t1}")
        a.op(f"v_and_b32 v{t4}, 8, v{t1}")
        a.op(f"v_and_b32 v{t1}, 0xfffffff3, v{t1}")
        a.op(f"v_lshl_or_b32 v{t1}, v{t3}, 1, v{t1}")
        a.op(f"v_lshrrev_b32 v{t4}, 1, v{t4}")
        a.op(f"v_or_b32 v{t1}, v{t4}, v{t1}")
        a.op(f"v_mul_u32_u24 v{t1}, 1280, v{t1}")
        a.op(f"v_add3_u32 v{vw+m}, v{t1}, v{t2}, s17")
        if 0 < m < 4: a.op(f"v_subrev_u32 v{vw+m}, {1024*m}, v{vw+m}")
    a.op("s_waitcnt lgkmcnt(0)")
    a.op(f"s_cmp_eq_u32 s{sBr}, 0")
    a.op("s_cselect_b32 s4, s4, s6")
    a.op("s_cselect_b32 s5, s5, s7")
    srd(a, SW, 4, 640*1280)
    srd(a, SO, 12, WS_SIZE)
    srd(a, SOUT, 8, 2048*2560)
    a.op(f"s_mul_i32 s{sT2}, s{sBr}, {OI_STRIDE}")
    a.op(f"s_add_u32 s{sT2}, s{sT2}, {WS_OI}")
    a.op(f"s_mul_i32 s42, s{sWave}, 40960")
    a.op(f"s_mul_i32 s43, s{sWave}, 5120")
    def issue_group(j):
        a.op(f"s_add_u32 s{sT}, s42, {j*4*40960}")
        a.op(f"s_add_u32 m0, s43, {j*4*5120}")
        for m in range(5):
            if m == 4:
                a.op("s_add_u32 m0, m0, 4096")
                a.op("s_nop 0")
                a.op(f"buffer_load_dwordx4 v{vw+m}, s[{SW}:{SW+3}], s{sT} offen lds")
            else:
                a.op(f"buffer_load_dwordx4 v{vw+m}, s[{SW}:{SW+3}], s{sT} offen offset:{1024*m} lds")
        for q in range(4):
            ks = 4*j + q
            a.op(f"s_add_u32 s{sT}, s{sT2}, {ks*131072}")
            for i in range(2):
                r = OF + (j % 3)*32 + (q*2 + i)*4
                a.op(f"buffer_load_dwordx4 v[{r}:{r+3}], v{vo}, s[{SO}:{SO+3}], s{sT} offen offset:{256*i}")
    for j in range(2): issue_group(j)
    a.op(f"v_and_b32 v{t0}, 15, v{vl}")
    a.op(f"v_lshrrev_b32 v{t1}, 4, v{vl}")
    a.op(f"v_lshrrev_b32 v{t2}, 1, v{t1}")
    a.op(f"v_lshlrev_b32 v{t2}, 4, v{t2}")
    a.op(f"v_and_b32 v{t3}, 1, v{t1}")
    a.op(f"v_lshl_add_u32 v{t2}, v{t3}, 2, v{t2}")
    a.op(f"v_lshrrev_b32 v{t3}, 2, v{t0}")
    a.op(f"v_add_u32 v{t2}, v{t2}, v{t3}")
    a.op(f"v_mul_u32_u24 v{t2}, 160, v{t2}")
    a.op(f"v_and_b32 v{t3}, 3, v{t0}")
    a.op(f"v_lshl_add_u32 v{aW}, v{t3}, 3, v{t2}")
    a.op(f"s_mul_i32 s16, s{sWave}, 5120")
    a.op(f"s_add_u32 s16, s16, {K3_W}")
    a.op(f"v_mul_u32_u24 v{t2}, 160, v{t0}")
    a.op(f"v_lshl_add_u32 v{t2}, v{t1}, 3, v{t2}")
    a.op(f"v_add_u32 v{aS}, s16, v{t2}")
    for r in range(ACC, ACC + 40): a.op(f"v_mov_b32 v{r}, 0")
    st_.stamp()
    lg = LgkmTracker(a)
    groups = [(ks, c) for ks in range(20) for c in range(5)]
    LA = 2
    ids = {}
    aWcur = [aW, 0]
    def rd(gi):
        ks, c = groups[gi]
        buf = WF[gi % NB]
        off = ks*5120 + c*32
        reg = aW
        if off + 1280 >= 65536:
            reg = t4; off -= 51200
        a.op(f"ds_read_b64_tr_b16 v[{buf}:{buf+1}], v{reg} offset:{off}"); lg.issue()
        a.op(f"ds_read_b64_tr_b16 v[{buf+2}:{buf+3}], v{reg} offset:{off + 8*160}"); ids[gi] = lg.issue()
    a.op(f"v_add_u32 v{t4}, 51200, v{aW}")
    for gi in range(len(groups) + LA):
        if gi < len(groups):
            ks, c = groups[gi]
            if c == 0 and ks % 4 == 0:
                j = ks // 4
                a.op(f"s_waitcnt vmcnt({[13, 13, 13, 13, 0][j]})")
                a.op("s_barrier")
                pending = j + 2 if j + 2 < 5 else None
            rd(gi)
            if c == 0 and ks % 4 == 1 and ks//4 + 2 < 5: issue_group(ks//4 + 2)
        m = gi - LA
        if m >= 0:
            ks, c = groups[m]
            lg.need(ids[m])
            buf = WF[m % NB]
            for i in range(2):
                acc = ACC + (i*5 + c)*4
                o = OF + ((ks//4) % 3)*32 + ((ks % 4)*2 + i)*4
                a.op(f"v_mfma_f32_16x16x32_bf16 v[{acc}:{acc+3}], v[{buf}:{buf+3}], v[{o}:{o+3}], v[{acc}:{acc+3}]")
    st_.stamp()
    a.op("s_nop 7")
    pk = WF[0]
    cnt = 0
    for i in range(2):
        for c in range(5):
            acc = ACC + (i*5 + c)*4
            p_ = pk + 2*(cnt % 4); cnt += 1
            a.op(f"v_cvt_pk_bf16_f32 v{p_}, v{acc}, v{acc+1}")
            a.op(f"v_cvt_pk_bf16_f32 v{p_+1}, v{acc+2}, v{acc+3}")
            a.op(f"ds_write_b64 v{aS}, v[{p_}:{p_+1}] offset:{i*16*160 + c*32}")
    a.op(f"s_mul_i32 s16, s{sWave}, 5120")
    a.op(f"s_add_u32 s16, s16, {K3_W}")
    a.op(f"v_lshl_add_u32 v{t0}, v{vl}, 4, s16")
    a.op("s_waitcnt lgkmcnt(0)")
    for m in range(5):
        a.op(f"ds_read_b128 v[{OF+4*m}:{OF+4*m+3}], v{t0} offset:{m*1024}")
    for m in range(5):
        a.op(f"s_waitcnt lgkmcnt({4-m})")
        a.op(f"buffer_store_dwordx4 v[{OF+4*m}:{OF+4*m+3}], v{vout+m}, s[{SOUT}:{SOUT+3}], 0 offen")
    st_.stamp()
    if stamps:
        a.op("s_waitcnt vmcnt(0)")
        st_.stamp()
        st_.dump(SO, sWave, t0)
    a.label(f"{name}_end")
    a.op("s_endpgm")
    return nv
```

```python
from common import *
import struct
def f32hex(x): return "0x%08x" % struct.unpack("<I", struct.pack("<f", x))[0]
LOG2E = 1.4426950408889634
NPART = 8
PART_BYTES = 21*40*4

class PhiRegs:
    def __init__(self, ra):
        self.A1m = ra.get(4, 2); self.A2m = ra.get(4, 2); self.A1t = ra.get(2, 2); self.A2t = ra.get(2, 2)
        self.Xm = ra.get(4, 2); self.Xt = ra.get(2, 2)
        self.D1 = ra.get(16, 2); self.D2 = ra.get(16, 2)
        self.P = ra.get(12, 2)
        self.t = ra.get(6, 2)

def build_phi_operands(a, F, vl, sHead, SPHI, lds_base_s, tmp):
    t0, t1, t2, t3, t4, t5 = tmp
    a.op(f"s_mul_i32 s14, s{sHead}, 800")
    a.op(f"v_lshlrev_b32 v{t0}, 4, v{vl}")
    a.op(f"buffer_load_dwordx4 v[{F.D1}:{F.D1+3}], v{t0}, s[{SPHI}:{SPHI+3}], s14 offen")
    a.op(f"v_add_u32 v{t0}, s{lds_base_s}, v{t0}")
    a.op("s_waitcnt vmcnt(0)")
    a.op(f"ds_write_b128 v{t0}, v[{F.D1}:{F.D1+3}]")
    a.op(f"v_and_b32 v{t1}, 31, v{vl}")
    a.op(f"v_lshrrev_b32 v{t2}, 3, v{t1}")
    a.op(f"v_and_b32 v{t3}, 3, v{t1}")
    a.op(f"v_lshl_add_u32 v{t4}, v{t2}, 2, v{t3}")
    a.op(f"v_add_u32 v{t3}, 16, v{t3}")
    a.op(f"v_lshrrev_b32 v{t5}, 5, v{vl}")
    a.op(f"v_mul_u32_u24 v{t5}, 320, v{t5}")
    a.op(f"v_lshl_add_u32 v{t4}, v{t4}, 1, v{t5}")
    a.op(f"v_lshl_add_u32 v{t3}, v{t3}, 1, v{t5}")
    a.op(f"v_add_u32 v{t4}, s{lds_base_s}, v{t4}")
    a.op(f"v_add_u32 v{t3}, s{lds_base_s}, v{t3}")
    a.op("s_waitcnt lgkmcnt(0)")
    for (tmpb, ad) in ((F.D1, t4), (F.D2, t3)):
        for j in range(8):
            a.op(f"ds_read_u16 v{tmpb + j}, v{ad} offset:{j*40}")
    a.op(f"v_subrev_u32 v{t4}, v{t5}, v{t4}")
    a.op(f"v_subrev_u32 v{t3}, v{t5}, v{t3}")
    a.op("s_waitcnt lgkmcnt(0)")
    for (tmpb, ad) in ((F.D1, t4), (F.D2, t3)):
        for j in range(4):
            a.op(f"ds_read_u16 v{tmpb + 8 + j}, v{ad} offset:{(16+j)*40}")
    a.op("s_waitcnt lgkmcnt(0)")
    for (tmpb, dm, dt) in ((F.D1, F.A1m, F.A1t), (F.D2, F.A2m, F.A2t)):
        for j in range(4):
            a.op(f"v_lshl_or_b32 v{dm + j}, v{tmpb + 2*j + 1}, 16, v{tmpb + 2*j}")
        for j in range(2):
            a.op(f"v_lshl_or_b32 v{dt + j}, v{tmpb + 8 + 2*j + 1}, 16, v{tmpb + 8 + 2*j}")
    a.op(f"v_bfe_u32 v{t0}, v{t1}, 2, 1")
    a.op(f"v_mov_b32 v{t5}, 0x80008000")
    a.op(f"v_mul_lo_u32 v{t0}, v{t0}, v{t5}")
    for r in list(range(F.A1m, F.A1m+4)) + list(range(F.A2m, F.A2m+4)) + [F.A1t, F.A1t+1, F.A2t, F.A2t+1]:
        a.op(f"v_xor_b32 v{r}, v{r}, v{t0}")
    a.op(f"v_cmp_eq_u32 vcc, 0, v{t2}")
    for r in list(range(F.A2m, F.A2m+4)) + [F.A2t, F.A2t+1]:
        a.op(f"v_cndmask_b32 v{r}, 0, v{r}, vcc")
    a.op(f"v_cmp_gt_u32 vcc, 32, v{vl}")
    for r in (F.A1t, F.A1t+1, F.A2t, F.A2t+1):
        a.op(f"v_cndmask_b32 v{r}, 0, v{r}, vcc")

def feature_map(a, F):
    a.op(f"v_mfma_f32_32x32x16_bf16 v[{F.D1}:{F.D1+15}], v[{F.A1m}:{F.A1m+3}], v[{F.Xm}:{F.Xm+3}], 0")
    a.op(f"v_mfma_f32_32x32x16_bf16 v[{F.D2}:{F.D2+15}], v[{F.A2m}:{F.A2m+3}], v[{F.Xm}:{F.Xm+3}], 0")
    a.op(f"v_mfma_f32_32x32x8bf16_1k v[{F.D1}:{F.D1+15}], v[{F.A1t}:{F.A1t+1}], v[{F.Xt}:{F.Xt+1}], v[{F.D1}:{F.D1+15}]")
    a.op(f"v_mfma_f32_32x32x8bf16_1k v[{F.D2}:{F.D2+15}], v[{F.A2t}:{F.A2t+1}], v[{F.Xt}:{F.Xt+1}], v[{F.D2}:{F.D2+15}]")
    a.op("s_nop 7"); a.op("s_nop 3")
    x = [F.D1 + i for i in range(16)] + [F.D2 + i for i in range(4)]
    m, z = F.t, F.t + 2
    a.op(f"v_max3_f32 v{m}, v{x[0]}, v{x[1]}, v{x[2]}")
    for i in range(3, 19, 2):
        a.op(f"v_max3_f32 v{m}, v{x[i]}, v{x[i+1]}, v{m}")
    a.op(f"v_max_f32 v{m}, v{x[19]}, v{m}")
    a.op(f"v_mul_f32 v{m}, {f32hex(-LOG2E)}, v{m}")
    a.op(f"s_mov_b32 s14, {f32hex(LOG2E)}")
    a.op(f"s_mov_b32 s15, {f32hex(LOG2E)}")
    a.op(f"v_mov_b32 v{m+1}, v{m}")
    for i in range(0, 20, 2):
        a.op(f"v_pk_fma_f32 v[{x[i]}:{x[i+1]}], v[{x[i]}:{x[i+1]}], s[14:15], v[{m}:{m+1}]")
    for i in range(20):
        a.op(f"v_exp_f32 v{x[i]}, v{x[i]}")
    a.op("s_nop 0")
    a.op(f"v_pk_add_f32 v[{z}:{z+1}], v[{x[0]}:{x[1]}], v[{x[2]}:{x[3]}]")
    for i in range(4, 20, 2):
        a.op(f"v_pk_add_f32 v[{z}:{z+1}], v[{z}:{z+1}], v[{x[i]}:{x[i+1]}]")
    a.op(f"v_add_f32 v{z}, v{z}, v{z+1}")
    a.op(f"v_rcp_f32 v{z}, v{z}")
    a.op("s_nop 0")
    a.op(f"v_mov_b32 v{z+1}, v{z}")
    for i in range(0, 20, 2):
        a.op(f"v_pk_mul_f32 v[{x[i]}:{x[i+1]}], v[{x[i]}:{x[i+1]}], v[{z}:{z+1}]")
    for i in range(10):
        a.op(f"v_cvt_pk_bf16_f32 v{F.P+i}, v{x[2*i]}, v{x[2*i+1]}")
    a.op(f"v_mov_b32 v{F.P+10}, 0")
    a.op(f"v_mov_b32 v{F.P+11}, 0")

def load_x_frag(a, F, vl, sBlk, sTok, SWS, t0, t1):
    a.op(f"v_and_b32 v{t0}, 31, v{vl}")
    a.op(f"v_add_u32 v{t0}, s{sTok}, v{t0}")
    a.op(f"v_lshrrev_b32 v{t1}, 5, v{vl}")
    a.op(f"v_lshlrev_b32 v{t1}, 15, v{t1}")
    a.op(f"v_lshl_add_u32 v{t1}, v{t0}, 4, v{t1}")
    a.op(f"v_lshlrev_b32 v{t0}, 3, v{t0}")
    a.op(f"buffer_load_dwordx4 v[{F.Xm}:{F.Xm+3}], v{t1}, s[{SWS}:{SWS+3}], s{sBlk} offen")
    a.op(f"s_add_u32 s14, s{sBlk}, {OFF_T}")
    a.op(f"buffer_load_dwordx2 v[{F.Xt}:{F.Xt+1}], v{t0}, s[{SWS}:{SWS+3}], s14 offen")

def common_ids(a, vl, t0, sWave, sHead, sTb):
    a.op(f"v_and_b32 v{vl}, 63, v0")
    a.op(f"v_lshrrev_b32 v{t0}, 6, v0")
    a.op(f"s_and_b32 s14, s2, 7")
    a.op(f"s_lshl_b32 s14, s14, 2")
    a.op(f"v_readfirstlane_b32 s{sWave}, v{t0}")
    a.op(f"s_bfe_u32 s15, s2, 0x20003")
    a.op(f"s_add_u32 s{sHead}, s14, s15")
    a.op(f"s_lshr_b32 s{sTb}, s2, 5")

KB2_LDS = 65536
def gen_kb2(a, name="kb2_kernel", stamps=False, opts={}):
    kernel_header(a, name)
    st_ = Stamps(a, stamps, slot=3)
    st_.stamp()
    ra = RegAlloc(1)
    vl = ra.get(1); tmp = [ra.get(1) for _ in range(6)]
    F = PhiRegs(ra)
    VA = [ra.get(4, 2), ra.get(4, 2)]
    BT = ra.get(4, 2)
    KVA = [ra.get(16, 2), ra.get(16, 2)]
    nv = ra.n
    sWave=20; sHead=21; sTb=22; sBlk=23; sTok=24; sScr=25; SWS=28; SPHI=32
    t0, t1, t2, t3, t4, t5 = tmp
    a.op("s_cmp_ge_u32 s2, 256")
    a.op(f"s_cbranch_scc1 {name}_end")
    a.op("s_load_dwordx2 s[12:13], s[0:1], 72")
    a.op("s_load_dwordx2 s[10:11], s[0:1], 40")
    common_ids(a, vl, t0, sWave, sHead, sTb)
    a.op(f"s_mul_i32 s{sBlk}, s{sHead}, {KVB}")
    a.op(f"s_add_u32 s{sBlk}, s{sBlk}, {BR_STRIDE + WS_KV}")
    a.op(f"s_lshl_b32 s{sTok}, s{sTb}, 8")
    a.op(f"s_lshl_b32 s14, s{sWave}, 5")
    a.op(f"s_add_u32 s{sTok}, s{sTok}, s14")
    a.op(f"s_lshl_b32 s{sScr}, s{sWave}, 12")
    a.op("s_waitcnt lgkmcnt(0)")
    srd(a, SWS, 12, WS_SIZE)
    srd(a, SPHI, 10, 32*800)
    load_x_frag(a, F, vl, sBlk, sTok, SWS, t0, t1)
    a.op(f"v_and_b32 v{t0}, 31, v{vl}")
    a.op(f"v_lshrrev_b32 v{t1}, 5, v{vl}")
    a.op(f"v_mul_u32_u24 v{t1}, 320, v{t1}")
    a.op(f"v_lshl_add_u32 v{t1}, v{t0}, 4, v{t1}")
    a.op(f"s_lshr_b32 s14, s{sTok}, 5")
    a.op(f"s_mul_i32 s14, s14, 1280")
    a.op(f"s_add_u32 s14, s14, s{sBlk}")
    a.op(f"s_add_u32 s14, s14, {OFF_V}")
    a.op(f"buffer_load_dwordx4 v[{VA[0]}:{VA[0]+3}], v{t1}, s[{SWS}:{SWS+3}], s14 offen")
    a.op(f"buffer_load_dwordx4 v[{VA[1]}:{VA[1]+3}], v{t1}, s[{SWS}:{SWS+3}], s14 offen offset:640")
    build_phi_operands(a, F, vl, sHead, SPHI, sScr, tmp)
    a.op(f"v_and_b32 v{t0}, 31, v{vl}")
    a.op(f"v_cmp_eq_u32 vcc, 20, v{t0}")
    a.op(f"v_mov_b32 v{t1}, 0x3f803f80")
    for s in range(2):
        for i in range(4): a.op(f"v_cndmask_b32 v{VA[s]+i}, v{VA[s]+i}, v{t1}, vcc")
    feature_map(a, F)
    a.op(f"v_and_b32 v{t0}, 31, v{vl}")
    a.op(f"v_mul_u32_u24 v{t0}, 80, v{t0}")
    a.op(f"v_lshrrev_b32 v{t1}, 5, v{vl}")
    a.op(f"v_mul_u32_u24 v{t1}, 40, v{t1}")
    a.op(f"v_add3_u32 v{t0}, v{t0}, v{t1}, s{sScr}")
    for i in range(5):
        a.op(f"ds_write_b64 v{t0}, v[{F.P+2*i}:{F.P+2*i+1}] offset:{8*i}")
    a.op(f"v_and_b32 v{t0}, 15, v{vl}")
    a.op(f"v_lshrrev_b32 v{t1}, 4, v{vl}")
    a.op(f"v_lshrrev_b32 v{t2}, 1, v{t1}")
    a.op(f"v_lshlrev_b32 v{t2}, 3, v{t2}")
    a.op(f"v_lshrrev_b32 v{t3}, 2, v{t0}")
    a.op(f"v_add_u32 v{t2}, v{t2}, v{t3}")
    a.op(f"v_mul_u32_u24 v{t2}, 80, v{t2}")
    a.op(f"v_and_b32 v{t1}, 1, v{t1}")
    a.op(f"v_lshlrev_b32 v{t1}, 5, v{t1}")
    a.op(f"v_and_b32 v{t0}, 3, v{t0}")
    a.op(f"v_lshl_add_u32 v{t1}, v{t0}, 3, v{t1}")
    a.op(f"v_add3_u32 v{t2}, v{t2}, v{t1}, s{sScr}")
    a.op("s_waitcnt lgkmcnt(0)")
    for ct in range(2):
        for s in range(2):
            a.op(f"ds_read_b64_tr_b16 v[{BT}:{BT+1}], v{t2} offset:{s*16*80 + ct*64}")
            a.op(f"ds_read_b64_tr_b16 v[{BT+2}:{BT+3}], v{t2} offset:{s*16*80 + 4*80 + ct*64}")
            a.op("s_waitcnt lgkmcnt(0)")
            c = "0" if s == 0 else f"v[{KVA[ct]}:{KVA[ct]+15}]"
            a.op(f"v_mfma_f32_32x32x16_bf16 v[{KVA[ct]}:{KVA[ct]+15}], v[{VA[s]}:{VA[s]+3}], v[{BT}:{BT+3}], {c}")
    a.op("s_nop 7"); a.op("s_nop 7")
    a.op("s_barrier")
    a.op(f"v_and_b32 v{t0}, 31, v{vl}")
    a.op(f"v_lshrrev_b32 v{t1}, 5, v{vl}")
    a.op(f"v_lshlrev_b32 v{t1}, 10, v{t1}")
    a.op(f"v_lshl_add_u32 v{t0}, v{t0}, 2, v{t1}")
    a.op(f"s_mul_i32 s14, s{sWave}, 6144")
    a.op(f"v_add_u32 v{t0}, s14, v{t0}")
    for ct in range(2):
        for r in range(12):
            d = 8*(r >> 2) + (r & 3)
            a.op(f"ds_write_b32 v{t0}, v{KVA[ct]+r} offset:{d*256 + ct*128}")
    a.op("s_waitcnt lgkmcnt(0)")
    a.op("s_barrier")
    for e in range(2):
        a.op(f"v_add_u32 v{t0}, {512*e}, v0")
        a.op(f"v_mul_u32_u24 v{t1}, 1639, v{t0}")
        a.op(f"v_lshrrev_b32 v{t1}, 16, v{t1}")
        a.op(f"v_mul_u32_u24 v{t2}, 40, v{t1}")
        a.op(f"v_sub_u32 v{t2}, v{t0}, v{t2}")
        a.op(f"v_lshlrev_b32 v{t1}, 8, v{t1}")
        a.op(f"v_lshl_add_u32 v{t1}, v{t2}, 2, v{t1}")
        for w in range(8):
            a.op(f"ds_read_b32 v{F.D1+w}, v{t1} offset:{w*6144}")
        a.op("s_waitcnt lgkmcnt(0)")
        for w in range(1, 8):
            a.op(f"v_add_f32 v{F.D1}, v{F.D1}, v{F.D1+w}")
        a.op(f"s_lshl_b32 s14, s{sHead}, 3")
        a.op(f"s_add_u32 s14, s14, s{sTb}")
        a.op(f"s_mul_i32 s14, s14, {PART_BYTES}")
        a.op(f"s_add_u32 s14, s14, {WS_KVP}")
        a.op(f"v_lshlrev_b32 v{t1}, 2, v{t0}")
        a.op(f"v_cmp_gt_u32 vcc, 840, v{t0}")
        a.op(f"v_mov_b32 v{t2}, 0x40000000")
        a.op(f"v_cndmask_b32 v{t1}, v{t2}, v{t1}, vcc")
        a.op(f"buffer_store_dword v{F.D1}, v{t1}, s[{SWS}:{SWS+3}], s14 offen")
    if stamps:
        a.op("s_waitcnt vmcnt(0)"); st_.stamp(); st_.dump(SWS, sWave, t0)
    a.label(f"{name}_end")
    a.op("s_endpgm")
    return nv

KB3_LDS = 40960
def gen_kb3(a, name="kb3_kernel", stamps=False, opts={}):
    kernel_header(a, name)
    st_ = Stamps(a, stamps, slot=4)
    st_.stamp()
    ra = RegAlloc(1)
    vl = ra.get(1); tmp = [ra.get(1) for _ in range(6)]
    F = PhiRegs(ra)
    KA = ra.get(12, 2)
    OD = ra.get(16, 2)
    adr = ra.get(3)
    nv = ra.n
    sWave=20; sHead=21; sTb=22; sBlk=23; sTok=24; sScr=25; SWS=28; SPHI=32
    t0, t1, t2, t3, t4, t5 = tmp
    a.op("s_cmp_ge_u32 s2, 256")
    a.op(f"s_cbranch_scc1 {name}_end")
    a.op("s_load_dwordx2 s[12:13], s[0:1], 72")
    a.op("s_load_dwordx2 s[10:11], s[0:1], 40")
    common_ids(a, vl, t0, sWave, sHead, sTb)
    a.op(f"s_mul_i32 s{sBlk}, s{sHead}, {QB}")
    a.op(f"s_add_u32 s{sBlk}, s{sBlk}, {BR_STRIDE + WS_Q}")
    a.op(f"s_lshl_b32 s{sTok}, s{sTb}, 8")
    a.op(f"s_lshl_b32 s14, s{sWave}, 5")
    a.op(f"s_add_u32 s{sTok}, s{sTok}, s14")
    a.op(f"s_lshl_b32 s{sScr}, s{sWave}, 12")
    a.op(f"s_add_u32 s{sScr}, s{sScr}, 4096")
    a.op("s_waitcnt lgkmcnt(0)")
    srd(a, SWS, 12, WS_SIZE)
    srd(a, SPHI, 10, 32*800)
    load_x_frag(a, F, vl, sBlk, sTok, SWS, t0, t1)
    a.op(f"v_lshlrev_b32 v{t0}, 4, v0")
    for i in range(4): a.op(f"v_mov_b32 v{OD+i}, 0")
    a.op(f"v_cmp_gt_u32 vcc, 192, v0")
    a.op("s_and_saveexec_b64 s[16:17], vcc")
    a.op(f"s_cbranch_execz {name}_z")
    a.op(f"ds_write_b128 v{t0}, v[{OD}:{OD+3}]")
    a.label(f"{name}_z")
    a.op("s_mov_b64 exec, s[16:17]")
    a.op(f"s_lshl_b32 s14, s{sHead}, 3")
    a.op(f"s_mul_i32 s14, s14, {PART_BYTES}")
    a.op(f"s_add_u32 s14, s14, {WS_KVP}")
    for e in range(2):
        a.op(f"v_add_u32 v{t0}, {512*e}, v0")
        a.op(f"v_lshlrev_b32 v{t1}, 2, v{t0}")
        a.op(f"v_cmp_gt_u32 vcc, 840, v{t0}")
        a.op(f"v_mov_b32 v{t2}, 0x40000000")
        a.op(f"v_cndmask_b32 v{t1}, v{t2}, v{t1}, vcc")
        for p in range(8):
            a.op(f"s_add_u32 s15, s14, {p*PART_BYTES}")
            a.op(f"buffer_load_dword v{F.D1+8*e+p}, v{t1}, s[{SWS}:{SWS+3}], s15 offen")
    a.op("s_waitcnt vmcnt(0) lgkmcnt(0)")
    a.op("s_barrier")
    for e in range(2):
        for p in range(1, 8):
            a.op(f"v_add_f32 v{F.D1+8*e}, v{F.D1+8*e}, v{F.D1+8*e+p}")
        a.op(f"v_cvt_pk_bf16_f32 v{F.D1+8*e}, v{F.D1+8*e}, v{F.D1+8*e}")
        a.op(f"v_add_u32 v{t0}, {512*e}, v0")
        a.op(f"v_mul_u32_u24 v{t1}, 1639, v{t0}")
        a.op(f"v_lshrrev_b32 v{t1}, 16, v{t1}")
        a.op(f"v_mul_u32_u24 v{t2}, 40, v{t1}")
        a.op(f"v_sub_u32 v{t2}, v{t0}, v{t2}")
        a.op(f"v_mul_u32_u24 v{t1}, 96, v{t1}")
        a.op(f"v_lshl_add_u32 v{t1}, v{t2}, 1, v{t1}")
        a.op(f"v_cmp_lt_u32 vcc, 19, v{t2}")
        a.op(f"v_mov_b32 v{t3}, 8")
        a.op(f"v_cndmask_b32 v{t3}, 0, v{t3}, vcc")
        a.op(f"v_add_u32 v{t1}, v{t1}, v{t3}")
        a.op(f"v_cmp_gt_u32 vcc, 840, v{t0}")
        a.op("s_and_saveexec_b64 s[16:17], vcc")
        a.op(f"s_cbranch_execz {name}_w{e}")
        a.op(f"ds_write_b16 v{t1}, v{F.D1+8*e}")
        a.label(f"{name}_w{e}")
        a.op("s_mov_b64 exec, s[16:17]")
    build_phi_operands(a, F, vl, sHead, SPHI, sScr, tmp)
    feature_map(a, F)
    a.op("s_waitcnt lgkmcnt(0)")
    a.op("s_barrier")
    a.op(f"v_and_b32 v{t0}, 31, v{vl}")
    a.op(f"v_mul_u32_u24 v{t0}, 96, v{t0}")
    a.op(f"v_lshrrev_b32 v{t1}, 5, v{vl}")
    a.op(f"v_mul_u32_u24 v{t1}, 48, v{t1}")
    a.op(f"v_add_u32 v{t0}, v{t0}, v{t1}")
    for j in range(3):
        a.op(f"ds_read_b128 v[{KA+4*j}:{KA+4*j+3}], v{t0} offset:{16*j}")
    a.op("s_waitcnt lgkmcnt(0)")
    for j in range(3):
        c = "0" if j == 0 else f"v[{OD}:{OD+15}]"
        a.op(f"v_mfma_f32_32x32x16_bf16 v[{OD}:{OD+15}], v[{KA+4*j}:{KA+4*j+3}], v[{F.P+4*j}:{F.P+4*j+3}], {c}")
    a.op(f"v_and_b32 v{t2}, 31, v{vl}")
    a.op(f"v_add_u32 v{t2}, s{sTok}, v{t2}")
    a.op(f"v_lshlrev_b32 v{t2}, 4, v{t2}")
    a.op(f"v_lshrrev_b32 v{t3}, 5, v{vl}")
    a.op(f"s_mul_i32 s14, s{sHead}, 5")
    a.op(f"v_add_u32 v{t3}, s14, v{t3}")
    for aa in range(3):
        a.op(f"v_add_u32 v{t0}, {2*aa}, v{t3}")
        a.op(f"v_lshrrev_b32 v{t1}, 1, v{t0}")
        a.op(f"v_lshlrev_b32 v{t1}, 15, v{t1}")
        a.op(f"v_and_b32 v{t0}, 1, v{t0}")
        a.op(f"v_lshl_add_u32 v{t1}, v{t0}, 3, v{t1}")
        a.op(f"v_add_u32 v{adr+aa}, v{t1}, v{t2}")
    a.op(f"v_cmp_gt_u32 vcc, 32, v{vl}")
    a.op(f"v_mov_b32 v{t0}, 0x40000000")
    a.op(f"v_cndmask_b32 v{adr+2}, v{t0}, v{adr+2}, vcc")
    a.op("s_nop 7")
    a.op(f"v_mov_b32 v{t0}, v{OD+8}")
    a.op(f"v_mov_b32 v{t1}, v{OD+8}")
    a.op("s_nop 1")
    a.op(f"v_permlane32_swap_b32 v{t0}, v{t1}")
    a.op("s_nop 1")
    a.op(f"v_add_f32 v{t1}, {f32hex(1e-6)}, v{t1}")
    a.op(f"v_rcp_f32 v{t1}, v{t1}")
    a.op("s_nop 0")
    for i in range(12):
        a.op(f"v_mul_f32 v{OD+i}, v{OD+i}, v{t1}")
    for j in range(6):
        a.op(f"v_cvt_pk_bf16_f32 v{KA+j}, v{OD+2*j}, v{OD+2*j+1}")
    a.op(f"s_mov_b32 s14, {WS_OI + OI_STRIDE}")
    for aa in range(3):
        a.op(f"buffer_store_dwordx2 v[{KA+2*aa}:{KA+2*aa+1}], v{adr+aa}, s[{SWS}:{SWS+3}], s14 offen")
    if stamps:
        a.op("s_waitcnt vmcnt(0)"); st_.stamp(); st_.dump(SWS, sWave, t0)
    a.label(f"{name}_end")
    a.op("s_endpgm")
    return nv
```

```python
import sys, functools
sys.path.insert(0, "gen")
from build import build
import k1, k2, kb, k3
def full(stamps=False, opts={}, verbose=False):
    P = functools.partial
    return build([("k1_kernel", P(k1.gen_k1, stamps=stamps, opts=opts.get('k1', {})), 256, k1.K1_BLOCK, k1.K1_LDS),
                  ("k2_kernel", P(k2.gen_k2, stamps=stamps, opts=opts.get('k2', {})), 256, 512, k2.K2_LDS),
                  ("k3_kernel", P(k3.gen_k3, stamps=stamps, opts=opts.get('k3', {})), 256, 256, k3.K3_LDS)], verbose=verbose)
if __name__ == "__main__":
    out = sys.argv[1] if len(sys.argv) > 1 else "concat_heads__softmax_full_mha__linear_kernel_hedgehog__prompt.s"
    open(out, "w").write(full())
    print("wrote", out)
```
